```python
import torch

def _softmax(x, axis=-1):
    return torch.softmax(x, dim=axis)
def _gelu(x):
    return torch.nn.functional.gelu(x, approximate="tanh")
def _silu(x):
    return torch.nn.functional.silu(x)
def _sigmoid(x):
    return torch.sigmoid(x)
def _layernorm(x, axis=-1, eps=1e-5):
    m = x.mean(dim=axis, keepdim=True)
    v = x.var(dim=axis, keepdim=True, unbiased=False)
    return (x - m) / torch.sqrt(v + eps)
def _scatter_add(tgt, idx, src, axis=0):
    return tgt.clone().index_add_(axis, idx, src)
def _segment_sum(src, seg, n):
    out = torch.zeros((n,) + src.shape[1:], dtype=src.dtype)
    return out.index_add_(0, seg, src)
def _pad(x, pw):
    flat = tuple(v for pair in reversed(pw) for v in pair)
    return torch.nn.functional.pad(x, flat)

kernel_name = 'standalone__spectral_conv_chebnet__graph'

def setup_inputs():

    _w = (lambda a: (lambda t: t.to(torch.bfloat16) if t.is_floating_point() else t)(torch.as_tensor(a)))
    N, deg, D, K = 50000, 16, 64, 2
    E = N * deg
    src = (lambda lo, hi, *s: torch.randint(lo, hi, s))(0, N, E).to(torch.int64)
    dst = (lambda lo, hi, *s: torch.randint(lo, hi, s))(0, N, E).to(torch.int64)
    deg_cnt = torch.bincount(dst, minlength=N).to(float) + 1.0
    dis = (1.0 / (lambda _x: torch.sqrt(torch.as_tensor(_x)))(deg_cnt)).to(float)
    ew = -(dis[src] * dis[dst])
    return {
        "x": _w((lambda *s: torch.randn(*s, dtype=torch.bfloat16) * 0.05)(N, D)),
        "src": _w(src),
        "dst": _w(dst),
        "ew": _w(ew),
        "w": _w((lambda *s: torch.randn(*s, dtype=torch.bfloat16) * 0.05)(K, D, D) * 0.2),
    }

def reference(x, src, dst, ew, w):
    N, K = x.shape[0], w.shape[0]
    Ts = [x]
    if K > 1:
        Ts.append(_segment_sum(ew[:, None] * x[src], dst, N))
    for k in range(2, K):
        Tk = 2.0 * _segment_sum(ew[:, None] * Ts[-1][src], dst, N) - Ts[-2]
        Ts.append(Tk)
    T = torch.stack(Ts, 0)
    return torch.einsum('knd,kde->ne', T, w)
```

```python
HDR = open('standalone__spectral_conv_chebnet__graph.s.ref').read().split('; Override launch')[0]
G=128; CH=6250; B=500; R=100
OFF_C=0; OFF_ST=262144; OFF_WF=0x42000; OFF_REC=0x100000
o=[]
def e(s): o.append(s)
e(HDR.rstrip())
e("; @launch kernel=k1_count_kernel grid=(129,1,1) block=(1024,1,1) lds=2048")
e("; @launch kernel=k3_scatter_kernel grid=(128,1,1) block=(1024,1,1) lds=14336")
e("; @launch kernel=k4_main_kernel grid=(500,1,1) block=(512,1,1) lds=28672")
e('.amdgcn_target "amdgcn-amd-amdhsa--gfx950"')
e('.text')
def srd(d, lo, hi, size):
    e(f"  s_mov_b32 s{d}, s{lo}\n  s_mov_b32 s{d+1}, s{hi}\n  s_mov_b32 s{d+2}, {size}\n  s_mov_b32 s{d+3}, 0x00020000")
def head(name):
    e(f".globl {name}\n.p2align 8\n.type {name},@function\n{name}:")
head("k1_count_kernel")
e("""  s_cmp_gt_u32 s2, 128
  s_cbranch_scc1 L_k1_end
  s_load_dwordx2 s[4:5], s[0:1], 16
  s_load_dwordx2 s[6:7], s[0:1], 56
  s_load_dwordx2 s[16:17], s[0:1], 32
  v_lshlrev_b32 v1, 2, v0
  v_mov_b32 v2, 0
  s_cmp_eq_u32 s2, 128
  s_cbranch_scc1 L_k1_wt
  v_cmp_gt_u32 vcc, 512, v0
  s_and_saveexec_b64 s[20:21], vcc
  ds_write_b32 v1, v2
  s_mov_b64 exec, s[20:21]
  s_waitcnt lgkmcnt(0)""")
srd(8,4,5,3200000)
srd(12,6,7,OFF_ST)
e("  s_mul_i32 s3, s2, 25000")
for i in range(7):
    e(f"  s_add_u32 s{24+i}, s3, {i*4096}")
for i in range(6):
    e(f"  buffer_load_dword v{10+i}, v1, s[8:11], s{24+i} offen")
e("""  v_cmp_gt_u32 vcc, 106, v0
  s_and_saveexec_b64 s[20:21], vcc
  buffer_load_dword v16, v1, s[8:11], s30 offen
  s_mov_b64 exec, s[20:21]
  s_barrier
  v_mov_b32 v3, 1""")
for i in range(7):
    if i==6:
        e("  s_and_saveexec_b64 s[20:21], vcc")
    e(f"""  s_waitcnt vmcnt({6-i})
  v_mul_u32_u24 v4, 83887, v{10+i}
  v_lshrrev_b32 v4, 23, v4
  v_lshlrev_b32 v4, 2, v4
  ds_add_u32 v4, v3""")
e("""  s_mov_b64 exec, s[20:21]
  s_waitcnt lgkmcnt(0)
  s_barrier
  v_cmp_gt_u32 vcc, 512, v0
  s_and_saveexec_b64 s[20:21], vcc
  ds_read_b32 v5, v1
  s_lshl_b32 s3, s2, 11
  s_waitcnt lgkmcnt(0)
  buffer_store_dword v5, v1, s[12:15], s3 offen
  s_endpgm
L_k1_wt:
  s_waitcnt lgkmcnt(0)""")
srd(8,16,17,16384)
srd(12,6,7,OFF_WF+16384)
e("""  v_lshrrev_b32 v4, 8, v0      ; mt
  v_bfe_u32 v5, v0, 6, 2       ; ks
  v_and_b32 v6, 15, v0
  v_bfe_u32 v7, v0, 4, 2       ; l>>4
  v_lshl_add_u32 v6, v4, 4, v6 ; n
  v_lshlrev_b32 v5, 5, v5
  v_lshl_add_u32 v5, v7, 3, v5 ; k
  v_lshlrev_b32 v5, 7, v5      ; k*128
  v_lshl_add_u32 v5, v6, 1, v5 ; + n*2""")
for j in range(8):
    e(f"  buffer_load_ushort v{10+j}, v5, s[8:11], 0 offen offset:{j*128}")
e("  s_waitcnt vmcnt(0)")
for j in range(4):
    e(f"  v_lshl_or_b32 v{20+j}, v{11+2*j}, 16, v{10+2*j}")
e(f"""  v_lshlrev_b32 v4, 4, v0
  s_mov_b32 s3, {OFF_WF}
  buffer_store_dwordx4 v[20:23], v4, s[12:15], s3 offen
L_k1_end:
  s_endpgm""")
head("k3_scatter_kernel")
e("""  s_cmp_ge_u32 s2, 128
  s_cbranch_scc1 L_k3_end
  s_load_dwordx4 s[4:7], s[0:1], 8
  s_load_dwordx2 s[16:17], s[0:1], 24   ; ew
  s_load_dwordx2 s[18:19], s[0:1], 56   ; ws
  v_lshlrev_b32 v1, 2, v0
  v_lshlrev_b32 v2, 1, v0
  s_waitcnt lgkmcnt(0)""")
srd(8,4,5,3200000)
srd(12,6,7,3200000)
srd(36,16,17,1600000)
srd(40,18,19,OFF_REC+6400000)
e("  s_mul_i32 s3, s2, 25000\n  s_mul_i32 s44, s2, 12500")
for i in range(7):
    e(f"  s_add_u32 s{24+i}, s3, {i*4096}")
    e(f"  s_add_u32 s{46+i}, s44, {i*2048}")
e("  v_cmp_gt_u32 vcc, 106, v0")
for i in range(7):
    if i==6: e("  s_and_saveexec_b64 s[20:21], vcc")
    e(f"  buffer_load_dword v{10+i}, v1, s[12:15], s{24+i} offen")
    e(f"  buffer_load_dword v{17+i}, v1, s[8:11], s{24+i} offen")
    e(f"  buffer_load_ushort v{24+i}, v2, s[36:39], s{46+i} offen")
e("""  s_mov_b64 exec, s[20:21]
  v_and_b32 v3, 511, v0
  v_lshrrev_b32 v4, 9, v0          ; half
  v_lshlrev_b32 v5, 17, v4
  v_lshl_add_u32 v5, v3, 2, v5     ; C offset
  v_lshlrev_b32 v6, 6, v4          ; g' base
  v_mov_b32 v7, 0                  ; tot
  v_mov_b32 v8, 0                  ; bef
  s_mov_b32 s53, 0
L_k3_sum:""")
for k in range(16):
    e(f"  s_add_u32 s{54+k}, s53, {k*2048}")
    e(f"  buffer_load_dword v{40+k}, v5, s[40:43], s{54+k} offen")
for k in range(16):
    e(f"""  s_waitcnt vmcnt({15-k})
  v_cmp_gt_u32 vcc, s2, v6
  v_add_u32 v7, v7, v{40+k}
  v_add_u32 v6, 1, v6
  v_cndmask_b32 v9, 0, v{40+k}, vcc
  v_add_u32 v8, v8, v9""")
e("""  s_add_u32 s53, s53, 32768
  s_cmp_lt_u32 s53, 131072
  s_cbranch_scc1 L_k3_sum
  ds_write_b32 v1, v7
  ds_write_b32 v1, v8 offset:4096
  s_waitcnt lgkmcnt(0)
  s_barrier
  v_cmp_gt_u32 vcc, 512, v0
  s_and_saveexec_b64 s[20:21], vcc
  ds_read_b32 v7, v1
  ds_read_b32 v9, v1 offset:2048
  ds_read_b32 v8, v1 offset:4096
  ds_read_b32 v31, v1 offset:6144
  s_waitcnt lgkmcnt(0)
  v_add_u32 v7, v7, v9       ; tot
  v_add_u32 v8, v8, v31      ; bef
  v_mov_b32 v9, v7""")
for s in range(9):
    d=1<<s; buf=10240+(s&1)*2048
    e(f"""  ds_write_b32 v1, v9 offset:{buf}
  s_waitcnt lgkmcnt(0)
  s_mov_b64 exec, s[20:21]
  s_barrier
  v_cmp_gt_u32 vcc, 512, v0
  s_and_saveexec_b64 s[20:21], vcc
  v_subrev_u32 v31, {d*4}, v1
  v_max_i32 v31, 0, v31
  ds_read_b32 v32, v31 offset:{buf}
  v_cmp_le_u32 vcc, {d}, v0
  s_waitcnt lgkmcnt(0)
  v_cndmask_b32 v32, 0, v32, vcc
  v_add_u32 v9, v9, v32""")
e(f"""  v_sub_u32 v9, v9, v7
  v_add_u32 v31, v9, v8
  ds_write_b32 v1, v31 offset:8192
  s_cmp_lg_u32 s2, 0
  s_cbranch_scc1 L_k3_nost
  v_lshlrev_b32 v31, 3, v0
  v_mov_b32 v32, v9
  v_mov_b32 v33, v7
  s_mov_b32 s3, {OFF_ST}
  buffer_store_dwordx2 v[32:33], v31, s[40:43], s3 offen
L_k3_nost:
  s_waitcnt lgkmcnt(0)
  s_mov_b64 exec, s[20:21]
  s_barrier
  v_mov_b32 v3, 1
  s_mov_b32 s3, {OFF_REC}
  v_cmp_gt_u32 vcc, 106, v0""")
for i in range(7):
    if i==6: e("  s_and_saveexec_b64 s[20:21], vcc")
    e(f"""  v_mul_u32_u24 v4, 83887, v{10+i}
  v_lshrrev_b32 v4, 23, v4
  v_lshlrev_b32 v5, 2, v4
  ds_add_rtn_u32 v6, v5, v3 offset:8192
  v_mul_u32_u24 v4, 100, v4
  v_sub_u32 v4, v{10+i}, v4
  v_lshl_or_b32 v35, v{24+i}, 16, v4
  v_mov_b32 v34, v{17+i}
  s_waitcnt lgkmcnt(0)
  v_lshlrev_b32 v6, 3, v6
  buffer_store_dwordx2 v[34:35], v6, s[40:43], s3 offen""")
e("""L_k3_end:
  s_endpgm""")
head("k4_main_kernel")
e(f"""  s_cmp_ge_u32 s2, 500
  s_cbranch_scc1 L_k4_end
  s_load_dwordx2 s[4:5], s[0:1], 0
  s_load_dwordx2 s[6:7], s[0:1], 40
  s_load_dwordx2 s[18:19], s[0:1], 56
  v_lshlrev_b32 v1, 3, v0
  v_mov_b32 v2, 0
  v_mov_b32 v3, 0""")
for i in range(7):
    e(f"  ds_write_b64 v1, v[2:3] offset:{i*4096}")
e(f"""  s_waitcnt lgkmcnt(0)
  s_lshl_b32 s3, s2, 3
  s_add_u32 s20, s18, {OFF_ST}
  s_addc_u32 s21, s19, 0
  s_load_dwordx2 s[22:23], s[20:21], s3   ; start, n""")
srd(8,4,5,6400000)
srd(12,6,7,6400000)
srd(40,18,19,OFF_WF+16384)
e(f"""  s_mov_b32 s44, s18
  s_mov_b32 s45, s19
  s_mov_b32 s47, 0x00020000
  v_lshrrev_b32 v4, 6, v0
  v_and_b32 v5, 63, v0
  s_nop 0
  v_readfirstlane_b32 s24, v4
  v_lshrrev_b32 v6, 5, v5            ; lane>>5
  v_and_b32 v7, 31, v5
  v_lshlrev_b32 v7, 2, v7            ; (lane&31)*4
  v_lshlrev_b32 v6, 3, v6            ; half*8
  s_waitcnt lgkmcnt(0)
  s_add_u32 s25, s22, s23
  s_lshl_b32 s25, s25, 3
  s_add_u32 s46, s25, {OFF_REC}
  s_lshl_b32 s26, s22, 3
  s_add_u32 s26, s26, {OFF_REC}
  s_lshl_b32 s27, s24, 5
  s_barrier
L_k4_loop:
  s_cmp_ge_u32 s27, s23
  s_cbranch_scc1 L_k4_gemm
  s_lshl_b32 s28, s27, 3
  s_add_u32 s28, s28, s26""")
for p in range(16):
    e(f"  buffer_load_dwordx2 v[{10+2*p}:{11+2*p}], v6, s[44:47], s28 offen offset:{p*16}")
for p in range(16):
    e(f"""  s_waitcnt vmcnt({15-p if p<15 else 0})
  v_lshl_add_u32 v8, v{10+2*p}, 7, v7
  buffer_load_dword v{44+p}, v8, s[8:11], 0 offen""") if False else None
e("  s_waitcnt vmcnt(0)")
for p in range(16):
    e(f"""  v_lshl_add_u32 v8, v{10+2*p}, 7, v7
  buffer_load_dword v{44+p}, v8, s[8:11], 0 offen""")
for p in range(16):
    e(f"""  s_waitcnt vmcnt({15-p})
  v_and_b32 v60, 0xffff0000, v{11+2*p}
  v_and_b32 v61, 0xffff, v{11+2*p}
  v_lshlrev_b32 v62, 16, v{44+p}
  v_and_b32 v63, 0xffff0000, v{44+p}
  v_lshl_add_u32 v61, v61, 8, v7
  v_mul_f32 v62, v62, v60
  v_mul_f32 v63, v63, v60
  ds_add_f32 v61, v62
  ds_add_f32 v61, v63 offset:128""")
e(f"""  s_add_u32 s27, s27, 256
  s_branch L_k4_loop
L_k4_gemm:
  s_waitcnt lgkmcnt(0)
  s_barrier
  s_cmp_ge_u32 s24, 7
  s_cbranch_scc1 L_k4_end
  v_lshlrev_b32 v8, 4, v5
  s_mov_b32 s3, {OFF_WF}""")
for f in range(16):
    e(f"  buffer_load_dwordx4 v[{64+4*f}:{67+4*f}], v8, s[40:43], s3 offen offset:{f*1024}") if f<4 else \
    e(f"  s_mov_b32 s29, {OFF_WF+f*1024}\n  buffer_load_dwordx4 v[{64+4*f}:{67+4*f}], v8, s[40:43], s29 offen")
e("""  v_and_b32 v9, 15, v5
  s_lshl_b32 s29, s24, 4
  v_add_u32 v9, s29, v9
  v_lshrrev_b32 v10, 4, v5          ; q
  s_mul_i32 s30, s2, 12800
  v_lshlrev_b32 v11, 7, v9
  v_lshl_add_u32 v12, v10, 4, v11
  v_cmp_gt_u32 vcc, 100, v9
  s_and_saveexec_b64 s[20:21], vcc
  buffer_load_dwordx4 v[16:19], v12, s[8:11], s30 offen
  buffer_load_dwordx4 v[20:23], v12, s[8:11], s30 offen offset:64
  s_mov_b64 exec, s[20:21]
  v_lshlrev_b32 v13, 8, v9
  v_lshl_add_u32 v13, v10, 4, v13
  ds_read_b128 v[24:27], v13
  ds_read_b128 v[28:31], v13 offset:128
  ds_read_b128 v[32:35], v13 offset:64
  ds_read_b128 v[36:39], v13 offset:192
  s_waitcnt lgkmcnt(0)""")
for h in range(2):
    for j in range(4):
        e(f"  v_cvt_pk_bf16_f32 v{40+4*h+j}, v{24+8*h+j}, v{28+8*h+j}")
e("  s_waitcnt vmcnt(0)")
for mt in range(4):
    for r in range(4): e(f"  v_mov_b32 v{48+4*mt+r}, 0")
e("  s_nop 1")
bsrc=[16,20,40,44]
for ks in range(4):
    for mt in range(4):
        f=mt*4+ks
        e(f"  v_mfma_f32_16x16x32_bf16 v[{48+4*mt}:{51+4*mt}], v[{64+4*f}:{67+4*f}], v[{bsrc[ks]}:{bsrc[ks]+3}], v[{48+4*mt}:{51+4*mt}]")
e("""  s_nop 7
  s_nop 7
  v_lshl_add_u32 v12, v10, 3, v11
  s_and_saveexec_b64 s[20:21], vcc""")
for mt in range(4):
    e(f"""  v_cvt_pk_bf16_f32 v{24+2*mt}, v{48+4*mt}, v{49+4*mt}
  v_cvt_pk_bf16_f32 v{25+2*mt}, v{50+4*mt}, v{51+4*mt}
  buffer_store_dwordx2 v[{24+2*mt}:{25+2*mt}], v12, s[12:15], s30 offen offset:{mt*32}""")
e("""L_k4_end:
  s_endpgm""")
e('.section .rodata,"a"')
for name,nv in (("k1_count_kernel",32),("k3_scatter_kernel",64),("k4_main_kernel",128)):
    e(f""".p2align 6
.amdhsa_kernel {name}
  .amdhsa_next_free_vgpr {nv}
  .amdhsa_next_free_sgpr 80
  .amdhsa_accum_offset {nv}
  .amdhsa_group_segment_fixed_size 0
  .amdhsa_kernarg_size 64
  .amdhsa_user_sgpr_count 2
  .amdhsa_user_sgpr_kernarg_segment_ptr 1
  .amdhsa_system_sgpr_workgroup_id_x 1
.end_amdhsa_kernel""")
open('standalone__spectral_conv_chebnet__graph.s','w').write("\n".join(o)+"\n")
```

```python
HDR = open('standalone__spectral_conv_chebnet__graph.s.ref').read().split('; Override launch')[0]
G=128; CH=6250; B=500; R=100
OFF_C=0; OFF_ST=262144; OFF_WF=0x42000; OFF_REC=0x100000
o=[]
def e(s): o.append(s)
e(HDR.rstrip())
e("; @launch kernel=k1_count_kernel grid=(129,1,1) block=(1024,1,1) lds=2048")
e("; @launch kernel=k3_scatter_kernel grid=(128,1,1) block=(1024,1,1) lds=14336")
e("; @launch kernel=k4_main_kernel grid=(500,1,1) block=(512,1,1) lds=47104")
e('.amdgcn_target "amdgcn-amd-amdhsa--gfx950"')
e('.text')
def srd(d, lo, hi, size):
    e(f"  s_mov_b32 s{d}, s{lo}\n  s_mov_b32 s{d+1}, s{hi}\n  s_mov_b32 s{d+2}, {size}\n  s_mov_b32 s{d+3}, 0x00020000")
def head(name):
    e(f".globl {name}\n.p2align 8\n.type {name},@function\n{name}:")
head("k1_count_kernel")
e("""  s_cmp_gt_u32 s2, 128
  s_cbranch_scc1 L_k1_end
  s_load_dwordx2 s[4:5], s[0:1], 16
  s_load_dwordx2 s[6:7], s[0:1], 56
  s_load_dwordx2 s[16:17], s[0:1], 32
  v_lshlrev_b32 v1, 2, v0
  v_mov_b32 v2, 0
  s_cmp_eq_u32 s2, 128
  s_cbranch_scc1 L_k1_wt
  v_cmp_gt_u32 vcc, 512, v0
  s_and_saveexec_b64 s[20:21], vcc
  ds_write_b32 v1, v2
  s_mov_b64 exec, s[20:21]
  s_waitcnt lgkmcnt(0)""")
srd(8,4,5,3200000)
srd(12,6,7,OFF_ST)
e("  s_mul_i32 s3, s2, 25000")
for i in range(7):
    e(f"  s_add_u32 s{24+i}, s3, {i*4096}")
for i in range(6):
    e(f"  buffer_load_dword v{10+i}, v1, s[8:11], s{24+i} offen")
e("""  v_cmp_gt_u32 vcc, 106, v0
  s_and_saveexec_b64 s[20:21], vcc
  buffer_load_dword v16, v1, s[8:11], s30 offen
  s_mov_b64 exec, s[20:21]
  s_barrier
  v_mov_b32 v3, 1""")
for i in range(7):
    if i==6:
        e("  s_and_saveexec_b64 s[20:21], vcc")
    e(f"""  s_waitcnt vmcnt({6-i})
  v_mul_u32_u24 v4, 83887, v{10+i}
  v_lshrrev_b32 v4, 23, v4
  v_lshlrev_b32 v4, 2, v4
  ds_add_u32 v4, v3""")
e("""  s_mov_b64 exec, s[20:21]
  s_waitcnt lgkmcnt(0)
  s_barrier
  v_cmp_gt_u32 vcc, 512, v0
  s_and_saveexec_b64 s[20:21], vcc
  ds_read_b32 v5, v1
  s_lshl_b32 s3, s2, 11
  s_waitcnt lgkmcnt(0)
  buffer_store_dword v5, v1, s[12:15], s3 offen
  s_endpgm
L_k1_wt:
  s_waitcnt lgkmcnt(0)""")
srd(8,16,17,16384)
srd(12,6,7,OFF_WF+16384)
e("""  v_lshrrev_b32 v4, 8, v0      ; mt
  v_bfe_u32 v5, v0, 6, 2       ; ks
  v_and_b32 v6, 15, v0
  v_bfe_u32 v7, v0, 4, 2       ; l>>4
  v_lshl_add_u32 v6, v4, 4, v6 ; n
  v_lshlrev_b32 v5, 5, v5
  v_lshl_add_u32 v5, v7, 3, v5 ; k
  v_lshlrev_b32 v5, 7, v5      ; k*128
  v_lshl_add_u32 v5, v6, 1, v5 ; + n*2""")
for j in range(8):
    e(f"  buffer_load_ushort v{10+j}, v5, s[8:11], 0 offen offset:{j*128}")
e("  s_waitcnt vmcnt(0)")
for j in range(4):
    e(f"  v_lshl_or_b32 v{20+j}, v{11+2*j}, 16, v{10+2*j}")
e(f"""  v_lshlrev_b32 v4, 4, v0
  s_mov_b32 s3, {OFF_WF}
  buffer_store_dwordx4 v[20:23], v4, s[12:15], s3 offen
L_k1_end:
  s_endpgm""")
head("k3_scatter_kernel")
e("""  s_cmp_ge_u32 s2, 128
  s_cbranch_scc1 L_k3_end
  s_load_dwordx4 s[4:7], s[0:1], 8
  s_load_dwordx2 s[16:17], s[0:1], 24   ; ew
  s_load_dwordx2 s[18:19], s[0:1], 56   ; ws
  v_lshlrev_b32 v1, 2, v0
  v_lshlrev_b32 v2, 1, v0
  s_waitcnt lgkmcnt(0)""")
srd(8,4,5,3200000)
srd(12,6,7,3200000)
srd(36,16,17,1600000)
srd(40,18,19,OFF_REC+6400000)
e("  s_mul_i32 s3, s2, 25000\n  s_mul_i32 s44, s2, 12500")
for i in range(7):
    e(f"  s_add_u32 s{24+i}, s3, {i*4096}")
    e(f"  s_add_u32 s{46+i}, s44, {i*2048}")
e("  v_cmp_gt_u32 vcc, 106, v0")
for i in range(7):
    if i==6: e("  s_and_saveexec_b64 s[20:21], vcc")
    e(f"  buffer_load_dword v{10+i}, v1, s[12:15], s{24+i} offen")
    e(f"  buffer_load_dword v{17+i}, v1, s[8:11], s{24+i} offen")
    e(f"  buffer_load_ushort v{24+i}, v2, s[36:39], s{46+i} offen")
e("""  s_mov_b64 exec, s[20:21]
  v_and_b32 v3, 511, v0
  v_lshrrev_b32 v4, 9, v0          ; half
  v_lshlrev_b32 v5, 17, v4
  v_lshl_add_u32 v5, v3, 2, v5     ; C offset
  v_lshlrev_b32 v6, 6, v4          ; g' base
  v_mov_b32 v7, 0                  ; tot
  v_mov_b32 v8, 0                  ; bef
  s_mov_b32 s53, 0
L_k3_sum:""")
for k in range(16):
    e(f"  s_add_u32 s{54+k}, s53, {k*2048}")
    e(f"  buffer_load_dword v{40+k}, v5, s[40:43], s{54+k} offen")
for k in range(16):
    e(f"""  s_waitcnt vmcnt({15-k})
  v_cmp_gt_u32 vcc, s2, v6
  v_add_u32 v7, v7, v{40+k}
  v_add_u32 v6, 1, v6
  v_cndmask_b32 v9, 0, v{40+k}, vcc
  v_add_u32 v8, v8, v9""")
e("""  s_add_u32 s53, s53, 32768
  s_cmp_lt_u32 s53, 131072
  s_cbranch_scc1 L_k3_sum
  ds_write_b32 v1, v7
  ds_write_b32 v1, v8 offset:4096
  s_waitcnt lgkmcnt(0)
  s_barrier
  v_cmp_gt_u32 vcc, 512, v0
  s_and_saveexec_b64 s[20:21], vcc
  ds_read_b32 v7, v1
  ds_read_b32 v9, v1 offset:2048
  ds_read_b32 v8, v1 offset:4096
  ds_read_b32 v31, v1 offset:6144
  s_waitcnt lgkmcnt(0)
  v_add_u32 v7, v7, v9       ; tot
  v_add_u32 v8, v8, v31      ; bef
  v_mov_b32 v9, v7""")
for s in range(9):
    d=1<<s; buf=10240+(s&1)*2048
    e(f"""  ds_write_b32 v1, v9 offset:{buf}
  s_waitcnt lgkmcnt(0)
  s_mov_b64 exec, s[20:21]
  s_barrier
  v_cmp_gt_u32 vcc, 512, v0
  s_and_saveexec_b64 s[20:21], vcc
  v_subrev_u32 v31, {d*4}, v1
  v_max_i32 v31, 0, v31
  ds_read_b32 v32, v31 offset:{buf}
  v_cmp_le_u32 vcc, {d}, v0
  s_waitcnt lgkmcnt(0)
  v_cndmask_b32 v32, 0, v32, vcc
  v_add_u32 v9, v9, v32""")
e(f"""  v_sub_u32 v9, v9, v7
  v_add_u32 v31, v9, v8
  ds_write_b32 v1, v31 offset:8192
  s_cmp_lg_u32 s2, 0
  s_cbranch_scc1 L_k3_nost
  v_lshlrev_b32 v31, 3, v0
  v_mov_b32 v32, v9
  v_mov_b32 v33, v7
  s_mov_b32 s3, {OFF_ST}
  buffer_store_dwordx2 v[32:33], v31, s[40:43], s3 offen
L_k3_nost:
  s_waitcnt lgkmcnt(0)
  s_mov_b64 exec, s[20:21]
  s_barrier
  v_mov_b32 v3, 1
  s_mov_b32 s3, {OFF_REC}
  v_cmp_gt_u32 vcc, 106, v0""")
for i in range(7):
    if i==6: e("  s_and_saveexec_b64 s[20:21], vcc")
    e(f"""  v_mul_u32_u24 v4, 83887, v{10+i}
  v_lshrrev_b32 v4, 23, v4
  v_lshlrev_b32 v5, 2, v4
  ds_add_rtn_u32 v6, v5, v3 offset:8192
  v_mul_u32_u24 v4, 100, v4
  v_sub_u32 v4, v{10+i}, v4
  v_lshl_or_b32 v35, v{24+i}, 16, v4
  v_mov_b32 v34, v{17+i}
  s_waitcnt lgkmcnt(0)
  v_lshlrev_b32 v6, 3, v6
  buffer_store_dwordx2 v[34:35], v6, s[40:43], s3 offen""")
e("""L_k3_end:
  s_endpgm""")
T1=0; HIST=25856; ST=26368; NEXT=27392; DUMMY=27424; SORTED=27456; CAP=2048
LDS4=47104
head("k4_main_kernel")
e(f"""  s_cmp_ge_u32 s2, 500
  s_cbranch_scc1 L_k4_end
  s_load_dwordx2 s[4:5], s[0:1], 0
  s_load_dwordx2 s[6:7], s[0:1], 40
  s_load_dwordx2 s[18:19], s[0:1], 56
  v_lshlrev_b32 v1, 4, v0
  v_mov_b32 v2, 0
  v_mov_b32 v3, 0
  v_mov_b32 v4, 0
  v_mov_b32 v5, 0""")
for i in range(3):
    e(f"  ds_write_b128 v1, v[2:5] offset:{i*8192}")
e(f"""  v_cmp_gt_u32 vcc, 80, v0
  s_and_saveexec_b64 s[20:21], vcc
  ds_write_b128 v1, v[2:5] offset:24576
  s_mov_b64 exec, s[20:21]
  v_cmp_gt_u32 vcc, 4, v0
  s_and_saveexec_b64 s[20:21], vcc
  v_lshlrev_b32 v6, 3, v0
  v_mov_b32 v2, 0x01000000
  ds_write_b64 v6, v[2:3] offset:{DUMMY}
  s_mov_b64 exec, s[20:21]
  s_waitcnt lgkmcnt(0)
  s_lshl_b32 s3, s2, 3
  s_add_u32 s20, s18, {OFF_ST}
  s_addc_u32 s21, s19, 0
  s_load_dwordx2 s[22:23], s[20:21], s3   ; start, n""")
srd(8,4,5,6400000)
srd(12,6,7,6400000)
srd(40,18,19,OFF_WF+16384)
e(f"""  s_mov_b32 s44, s18
  s_mov_b32 s45, s19
  s_mov_b32 s47, 0x00020000
  v_lshrrev_b32 v4, 6, v0
  v_and_b32 v5, 63, v0
  s_mov_b32 s48, 0x01010101
  s_mov_b32 s49, 0x01010101
  v_readfirstlane_b32 s24, v4
  v_and_b32 v93, 7, v5
  v_lshlrev_b32 v94, 5, v93          ; (lane&7)*32
  v_lshlrev_b32 v93, 4, v93          ; (lane&7)*16
  v_mov_b32 v95, {NEXT}
  v_mov_b32 v96, 1
  v_lshlrev_b32 v7, 3, v0            ; tid*8
  v_and_b32 v9, 15, v5
  s_lshl_b32 s29, s24, 4
  v_add_u32 v9, s29, v9
  v_lshrrev_b32 v10, 4, v5          ; q
  s_mul_i32 s30, s2, 12800
  v_lshlrev_b32 v11, 7, v9
  v_lshl_add_u32 v12, v10, 4, v11
  v_cmp_gt_u32 vcc, 100, v9
  s_and_saveexec_b64 s[20:21], vcc
  buffer_load_dwordx4 v[106:109], v12, s[8:11], s30 offen
  buffer_load_dwordx4 v[110:113], v12, s[8:11], s30 offen offset:64
  s_mov_b64 exec, s[20:21]
  s_waitcnt lgkmcnt(0)
  s_add_u32 s25, s22, s23
  s_lshl_b32 s25, s25, 3
  s_add_u32 s46, s25, {OFF_REC}
  s_lshl_b32 s26, s22, 3
  s_add_u32 s26, s26, {OFF_REC}
  s_mov_b32 s27, 0
L_k4_chunk:
  s_sub_u32 s28, s23, s27            ; remaining
  s_lshl_b32 s31, s27, 3
  s_add_u32 s31, s31, s26""")
for i in range(4):
    e(f"  s_add_u32 s{32+i}, s31, {i*4096}")
    e(f"  buffer_load_dwordx2 v[{10+2*i}:{11+2*i}], v7, s[44:47], s{32+i} offen")
e(f"""  v_cmp_gt_u32 vcc, 128, v0
  s_and_saveexec_b64 s[20:21], vcc
  v_lshlrev_b32 v6, 2, v0
  v_mov_b32 v2, 0
  ds_write_b32 v6, v2 offset:{HIST}
  ds_write_b32 v95, v2
  s_mov_b64 exec, s[20:21]
  s_waitcnt lgkmcnt(0)
  s_barrier""")
for i in range(4):
    e(f"""  v_add_u32 v6, {512*i}, v0
  v_cmp_gt_u32 vcc, s28, v6
  s_and_saveexec_b64 s[20:21], vcc
  s_waitcnt vmcnt({3-i})
  v_and_b32 v6, 0xffff, v{11+2*i}
  v_lshlrev_b32 v6, 2, v6
  ds_add_rtn_u32 v{18+i}, v6, v96 offset:{HIST}
  s_mov_b64 exec, s[20:21]""")
e(f"""  s_waitcnt lgkmcnt(0)
  s_barrier
  s_cmp_lg_u32 s24, 0
  s_cbranch_scc1 L_k4_noscan
  v_lshlrev_b32 v6, 3, v5
  ds_read_b64 v[22:23], v6 offset:{HIST}
  v_lshlrev_b32 v24, 1, v5           ; j0
  s_waitcnt lgkmcnt(0)
  v_add_u32 v25, 3, v22
  v_and_b32 v25, -4, v25
  v_max_u32 v25, 4, v25
  v_add_u32 v26, 3, v23
  v_and_b32 v26, -4, v26
  v_max_u32 v26, 4, v26
  v_cmp_gt_u32 vcc, 100, v24
  v_cndmask_b32 v25, 0, v25, vcc
  v_cndmask_b32 v26, 0, v26, vcc
  v_lshlrev_b32 v25, 3, v25          ; bytes
  v_lshlrev_b32 v26, 3, v26
  v_add_u32 v27, v25, v26
  v_mov_b32 v28, v27
  s_nop 1
  v_add_u32_dpp v28, v28, v28 row_shr:1 row_mask:0xf bank_mask:0xf bound_ctrl:0
  s_nop 1
  v_add_u32_dpp v28, v28, v28 row_shr:2 row_mask:0xf bank_mask:0xf bound_ctrl:0
  s_nop 1
  v_add_u32_dpp v28, v28, v28 row_shr:4 row_mask:0xf bank_mask:0xf bound_ctrl:0
  s_nop 1
  v_add_u32_dpp v28, v28, v28 row_shr:8 row_mask:0xf bank_mask:0xf bound_ctrl:0
  s_nop 1
  v_add_u32_dpp v28, v28, v28 row_bcast:15 row_mask:0xa bank_mask:0xf
  s_nop 1
  v_add_u32_dpp v28, v28, v28 row_bcast:31 row_mask:0xc bank_mask:0xf
  s_nop 1
  v_sub_u32 v28, v28, v27
  v_add_u32 v28, {SORTED}, v28       ; start0
  v_add_u32 v29, v28, v25
  v_mov_b32 v30, v29
  v_add_u32 v31, v29, v26            ; end1
  v_cmp_eq_u32 vcc, 50, v5
  v_mov_b32 v6, {DUMMY}
  v_mov_b32 v8, {DUMMY+32}
  v_cndmask_b32 v28, v28, v6, vcc
  v_cndmask_b32 v29, v29, v8, vcc
  v_lshlrev_b32 v6, 4, v5
  ds_write_b128 v6, v[28:31] offset:{ST}
  v_mov_b32 v2, 0x01000000
  v_mov_b32 v3, 0
  v_cmp_gt_u32 vcc, 50, v5
  s_and_b64 exec, exec, vcc""")
for h in range(2):
    for k in range(4):
        e(f"""  v_lshl_add_u32 v6, v{22+h}, 3, v{28+2*h}
  v_add_u32 v6, {8*k}, v6
  v_cmp_gt_u32 vcc, v{29+2*h}, v6
  s_and_saveexec_b64 s[20:21], vcc
  ds_write_b64 v6, v[2:3]
  s_mov_b64 exec, s[20:21]""")
e(f"""  s_mov_b64 exec, -1
L_k4_noscan:
  s_waitcnt lgkmcnt(0)
  s_barrier""")
for i in range(4):
    e(f"""  v_and_b32 v6, 0xffff, v{11+2*i}
  v_lshlrev_b32 v6, 3, v6
  ds_read_b32 v{22+i}, v6 offset:{ST}""")
for i in range(4):
    e(f"""  v_add_u32 v6, {512*i}, v0
  v_cmp_gt_u32 vcc, s28, v6
  s_and_saveexec_b64 s[20:21], vcc
  s_waitcnt lgkmcnt({3-i})
  v_lshl_add_u32 v6, v{18+i}, 3, v{22+i}
  ds_write_b64 v6, v[{10+2*i}:{11+2*i}]
  s_mov_b64 exec, s[20:21]""")
e(f"""  s_waitcnt lgkmcnt(0)
  s_barrier
  v_mov_b32 v88, 0
  v_mov_b32 v89, 0""")
for r in range(8): e(f"  v_mov_b32 v{80+r}, 0")
lab=[0]
def issue(X):
    d = 32 if X=='A' else 48; w = 64 if X=='A' else 68; n = 91 if X=='A' else 92; sl = 50 if X=='A' else 52
    lab[0]+=1
    e(f"""  v_cmp_eq_u32 vcc, v88, v89
  s_and_saveexec_b64 s[20:21], vcc
  s_cbranch_execz L_k4_ng{lab[0]}
  s_mov_b64 s[54:55], exec
  s_and_b64 exec, exec, s[48:49]
  ds_add_rtn_u32 v97, v95, v96
  s_mov_b64 exec, s[54:55]
  s_waitcnt lgkmcnt(0)
  ds_swizzle_b32 v97, v97 offset:0x18
  s_waitcnt lgkmcnt(0)
  v_min_u32 v97, 100, v97
  v_lshlrev_b32 v98, 3, v97
  ds_read_b64 v[88:89], v98 offset:{ST}
  v_lshl_add_u32 v90, v97, 8, v94
  s_waitcnt lgkmcnt(0)
L_k4_ng{lab[0]}:
  s_mov_b64 exec, s[20:21]
  ds_read_b128 v[72:75], v88
  ds_read_b128 v[76:79], v88 offset:16
  v_add_u32 v88, 32, v88
  v_mov_b32 v{n}, v90
  v_cmp_eq_u32 s[{sl}:{sl+1}], v88, v89
  s_waitcnt lgkmcnt(0)""")
    for k in range(4):
        e(f"""  v_lshl_add_u32 v97, v{72+2*k}, 7, v93
  buffer_load_dwordx4 v[{d+4*k}:{d+4*k+3}], v97, s[8:11], 0 offen
  v_mov_b32 v{w+k}, v{73+2*k}""")
def consume(X):
    d = 32 if X=='A' else 48; w = 64 if X=='A' else 68; n = 91 if X=='A' else 92; sl = 50 if X=='A' else 52
    lab[0]+=1
    for k in range(4):
        e(f"""  s_waitcnt vmcnt({7-k})
  v_lshrrev_b32 v97, 16, v{w+k}
  v_and_b32 v98, 0xffff0000, v{w+k}""")
        for j in range(4):
            e(f"""  v_dot2c_f32_bf16 v{80+2*j}, v{d+4*k+j}, v97
  v_dot2c_f32_bf16 v{81+2*j}, v{d+4*k+j}, v98""")
    e(f"""  s_and_saveexec_b64 s[20:21], s[{sl}:{sl+1}]
  s_cbranch_execz L_k4_nf{lab[0]}
  ds_read_b128 v[72:75], v{n}
  ds_read_b128 v[76:79], v{n} offset:16
  s_waitcnt lgkmcnt(0)""")
    for r in range(8): e(f"  v_add_f32 v{72+r}, v{72+r}, v{80+r}")
    e(f"""  ds_write_b128 v{n}, v[72:75]
  ds_write_b128 v{n}, v[76:79] offset:16""")
    for r in range(8): e(f"  v_mov_b32 v{80+r}, 0")
    e(f"""L_k4_nf{lab[0]}:
  s_mov_b64 exec, s[20:21]""")
e(f"  v_add_u32 v99, 25600, v94")
issue('A')
e("L_k4_loop:")
issue('B'); consume('A')
e("""  v_cmp_ne_u32 vcc, v99, v92
  s_cbranch_vccz L_k4_gdone""")
issue('A'); consume('B')
e("""  v_cmp_ne_u32 vcc, v99, v91
  s_cbranch_vccnz L_k4_loop
L_k4_gdone:
  s_waitcnt lgkmcnt(0)
  s_barrier""")
e(f"""  s_add_u32 s27, s27, {CAP}
  s_cmp_lt_u32 s27, s23
  s_cbranch_scc1 L_k4_chunk
  s_cmp_ge_u32 s24, 7
  s_cbranch_scc1 L_k4_end
  v_lshlrev_b32 v8, 4, v5
  s_mov_b32 s3, {OFF_WF}
  v_and_b32 v9, 15, v5
  s_lshl_b32 s29, s24, 4
  v_add_u32 v9, s29, v9
  v_lshrrev_b32 v10, 4, v5          ; q
  v_lshlrev_b32 v11, 7, v9
  s_waitcnt vmcnt(0)
  v_mov_b32 v16, v106
  v_mov_b32 v17, v107
  v_mov_b32 v18, v108
  v_mov_b32 v19, v109
  v_mov_b32 v20, v110
  v_mov_b32 v21, v111
  v_mov_b32 v22, v112
  v_mov_b32 v23, v113""")
for f in range(16):
    e(f"  buffer_load_dwordx4 v[{64+4*f}:{67+4*f}], v8, s[40:43], s3 offen offset:{f*1024}") if f<4 else \
    e(f"  s_mov_b32 s29, {OFF_WF+f*1024}\n  buffer_load_dwordx4 v[{64+4*f}:{67+4*f}], v8, s[40:43], s29 offen")
e("""  v_lshlrev_b32 v13, 8, v9
  v_lshl_add_u32 v13, v10, 5, v13
  ds_read_b128 v[24:27], v13
  ds_read_b128 v[28:31], v13 offset:16
  ds_read_b128 v[32:35], v13 offset:128
  ds_read_b128 v[36:39], v13 offset:144
  s_waitcnt lgkmcnt(0)""")
for h in range(2):
    for j in range(4):
        e(f"  v_cvt_pk_bf16_f32 v{40+4*h+j}, v{24+8*h+2*j}, v{25+8*h+2*j}")
e("  s_waitcnt vmcnt(0)")
for mt in range(4):
    for r in range(4): e(f"  v_mov_b32 v{48+4*mt+r}, 0")
e("  s_nop 1")
bsrc=[16,20,40,44]
for ks in range(4):
    for mt in range(4):
        f=mt*4+ks
        e(f"  v_mfma_f32_16x16x32_bf16 v[{48+4*mt}:{51+4*mt}], v[{64+4*f}:{67+4*f}], v[{bsrc[ks]}:{bsrc[ks]+3}], v[{48+4*mt}:{51+4*mt}]")
e("""  s_nop 7
  s_nop 7
  v_lshl_add_u32 v12, v10, 3, v11
  v_cmp_gt_u32 vcc, 100, v9
  s_and_saveexec_b64 s[20:21], vcc""")
for mt in range(4):
    e(f"""  v_cvt_pk_bf16_f32 v{24+2*mt}, v{48+4*mt}, v{49+4*mt}
  v_cvt_pk_bf16_f32 v{25+2*mt}, v{50+4*mt}, v{51+4*mt}
  buffer_store_dwordx2 v[{24+2*mt}:{25+2*mt}], v12, s[12:15], s30 offen offset:{mt*32}""")
e("""L_k4_end:
  s_endpgm""")
e('.section .rodata,"a"')
for name,nv in (("k1_count_kernel",32),("k3_scatter_kernel",64),("k4_main_kernel",128)):
    e(f""".p2align 6
.amdhsa_kernel {name}
  .amdhsa_next_free_vgpr {nv}
  .amdhsa_next_free_sgpr 80
  .amdhsa_accum_offset {nv}
  .amdhsa_group_segment_fixed_size 0
  .amdhsa_kernarg_size 64
  .amdhsa_user_sgpr_count 2
  .amdhsa_user_sgpr_kernarg_segment_ptr 1
  .amdhsa_system_sgpr_workgroup_id_x 1
.end_amdhsa_kernel""")
open('standalone__spectral_conv_chebnet__graph.s','w').write("\n".join(o)+"\n")
```

```python
HDR = open('standalone__spectral_conv_chebnet__graph.s.ref').read().split('; Override launch')[0]
G=256; CH=3125; B=500; R=100; CHB=25088
OFF_C=0; OFF_WF=0x80000; OFF_REC=0x100000
o=[]
def e(s): o.append(s)
e(HDR.rstrip())
e("; @launch kernel=k1_sort_kernel grid=(257,1,1) block=(1024,1,1) lds=27136")
e("; @launch kernel=k4_main_kernel grid=(500,1,1) block=(512,1,1) lds=49408")
e('.amdgcn_target "amdgcn-amd-amdhsa--gfx950"')
e('.text')
def srd(d, lo, hi, size):
    e(f"  s_mov_b32 s{d}, s{lo}\n  s_mov_b32 s{d+1}, s{hi}\n  s_mov_b32 s{d+2}, {size}\n  s_mov_b32 s{d+3}, 0x00020000")
def head(name):
    e(f".globl {name}\n.p2align 8\n.type {name},@function\n{name}:")
DPPS=["row_shr:1 row_mask:0xf bank_mask:0xf bound_ctrl:0","row_shr:2 row_mask:0xf bank_mask:0xf bound_ctrl:0","row_shr:4 row_mask:0xf bank_mask:0xf bound_ctrl:0","row_shr:8 row_mask:0xf bank_mask:0xf bound_ctrl:0","row_bcast:15 row_mask:0xa bank_mask:0xf","row_bcast:31 row_mask:0xc bank_mask:0xf"]
CNT=0; STAGE=2048
head("k1_sort_kernel")
e("""  s_cmp_gt_u32 s2, 256
  s_cbranch_scc1 L_k1_end
  s_load_dwordx4 s[4:7], s[0:1], 8
  s_load_dwordx4 s[16:19], s[0:1], 24   ; ew, w
  s_load_dwordx2 s[22:23], s[0:1], 56   ; ws
  s_cmp_eq_u32 s2, 256
  s_cbranch_scc1 L_k1_wt
  v_lshlrev_b32 v1, 2, v0
  v_lshlrev_b32 v2, 1, v0
  v_mov_b32 v4, 0
  v_cmp_gt_u32 vcc, 512, v0
  s_and_saveexec_b64 s[20:21], vcc
  ds_write_b32 v1, v4
  s_mov_b64 exec, s[20:21]
  s_waitcnt lgkmcnt(0)""")
srd(8,4,5,3200000)
srd(12,6,7,3200000)
srd(36,16,17,1600000)
srd(40,22,23,OFF_REC+G*CHB)
e("  s_mul_i32 s3, s2, 12500\n  s_mul_i32 s44, s2, 6250")
for i in range(4):
    e(f"  s_add_u32 s{24+i}, s3, {i*4096}")
    e(f"  s_add_u32 s{46+i}, s44, {i*2048}")
e("  v_cmp_gt_u32 vcc, 53, v0")
for i in range(4):
    if i==3: e("  s_and_saveexec_b64 s[20:21], vcc")
    e(f"  buffer_load_dword v{10+i}, v1, s[12:15], s{24+i} offen")
    e(f"  buffer_load_dword v{14+i}, v1, s[8:11], s{24+i} offen")
    e(f"  buffer_load_ushort v{18+i}, v2, s[36:39], s{46+i} offen")
e("""  s_mov_b64 exec, s[20:21]
  v_mov_b32 v3, 1
  s_barrier""")
for i in range(4):
    if i==3: e("  s_and_saveexec_b64 s[20:21], vcc")
    e(f"""  s_waitcnt vmcnt({3*(3-i)+2})
  v_mul_u32_u24 v4, 83887, v{10+i}
  v_lshrrev_b32 v4, 23, v4
  v_lshlrev_b32 v{22+i}, 2, v4
  ds_add_rtn_u32 v{26+i}, v{22+i}, v3 offset:{CNT}
  v_mul_u32_u24 v4, 100, v4
  v_sub_u32 v{10+i}, v{10+i}, v4""")
e(f"""  s_mov_b64 exec, s[20:21]
  s_waitcnt lgkmcnt(0)
  s_barrier
  v_cmp_gt_u32 vcc, 64, v0
  s_and_saveexec_b64 s[20:21], vcc
  s_cbranch_execz L_k1_noscan
  v_lshlrev_b32 v4, 5, v0
  ds_read_b128 v[40:43], v4 offset:{CNT}
  ds_read_b128 v[44:47], v4 offset:{CNT+16}
  v_mov_b32 v48, 0
  s_waitcnt lgkmcnt(0)""")
for j in range(8):
    e(f"  v_add_u32 v{49+j}, v{48+j}, v{40+j}")
e("  v_mov_b32 v58, v56")
for ctl in DPPS:
    e(f"  s_nop 1\n  v_add_u32_dpp v58, v58, v58 {ctl}")
e("  s_nop 1\n  v_sub_u32 v58, v58, v56")
for j in range(8):
    e(f"  v_add_u32 v{48+j}, v{48+j}, v58")
e(f"""  ds_write_b128 v4, v[48:51] offset:{CNT}
  ds_write_b128 v4, v[52:55] offset:{CNT+16}
  s_lshl_b32 s3, s2, 11
  buffer_store_dwordx4 v[48:51], v4, s[40:43], s3 offen
  buffer_store_dwordx4 v[52:55], v4, s[40:43], s3 offen offset:16
L_k1_noscan:
  s_mov_b64 exec, s[20:21]
  s_waitcnt lgkmcnt(0)
  s_barrier
  v_cmp_gt_u32 vcc, 53, v0""")
for i in range(4):
    if i==3: e("  s_and_saveexec_b64 s[20:21], vcc")
    e(f"  ds_read_b32 v{30+i}, v{22+i} offset:{CNT}")
e("  s_waitcnt vmcnt(0) lgkmcnt(0)")
for i in [3,0,1,2]:
    e(f"""  v_add_u32 v4, v{30+i}, v{26+i}
  v_lshlrev_b32 v4, 3, v4
  v_lshl_or_b32 v{35+2*i}, v{18+i}, 16, v{10+i}
  v_mov_b32 v{34+2*i}, v{14+i}
  ds_write_b64 v4, v[{34+2*i}:{35+2*i}] offset:{STAGE}""")
    if i==3: e("  s_mov_b64 exec, s[20:21]")
e(f"""  s_waitcnt lgkmcnt(0)
  s_barrier
  v_lshlrev_b32 v4, 4, v0
  s_mul_i32 s3, s2, {CHB}
  s_add_u32 s3, s3, {OFF_REC}
  s_add_u32 s24, s3, 16384
  ds_read_b128 v[40:43], v4 offset:{STAGE}
  v_cmp_gt_u32 vcc, 539, v0
  s_and_saveexec_b64 s[20:21], vcc
  ds_read_b128 v[44:47], v4 offset:{STAGE+16384}
  s_waitcnt lgkmcnt(0)
  buffer_store_dwordx4 v[44:47], v4, s[40:43], s24 offen
  s_mov_b64 exec, s[20:21]
  buffer_store_dwordx4 v[40:43], v4, s[40:43], s3 offen
  s_endpgm
L_k1_wt:
  s_waitcnt lgkmcnt(0)""")
srd(8,18,19,16384)
srd(12,22,23,OFF_WF+16384)
e("""  v_lshrrev_b32 v4, 8, v0      ; mt
  v_bfe_u32 v5, v0, 6, 2       ; ks
  v_and_b32 v6, 15, v0
  v_bfe_u32 v7, v0, 4, 2       ; l>>4
  v_lshl_add_u32 v6, v4, 4, v6 ; n
  v_lshlrev_b32 v5, 5, v5
  v_lshl_add_u32 v5, v7, 3, v5 ; k
  v_lshlrev_b32 v5, 7, v5      ; k*128
  v_lshl_add_u32 v5, v6, 1, v5 ; + n*2""")
for j in range(8):
    e(f"  buffer_load_ushort v{10+j}, v5, s[8:11], 0 offen offset:{j*128}")
e("  s_waitcnt vmcnt(0)")
for j in range(4):
    e(f"  v_lshl_or_b32 v{20+j}, v{11+2*j}, 16, v{10+2*j}")
e(f"""  v_lshlrev_b32 v4, 4, v0
  s_mov_b32 s3, {OFF_WF}
  buffer_store_dwordx4 v[20:23], v4, s[12:15], s3 offen
L_k1_end:
  s_endpgm""")
T1=0; HIST=25856; ST=26368; NEXT=27392; DUMMY=27424; SORTED=27456; CAP=2048
LDS4=49408; PA=47104; BASEA=48160; WT=48128
head("k4_main_kernel")
e(f"""  s_cmp_ge_u32 s2, 500
  s_cbranch_scc1 L_k4_end
  s_load_dwordx2 s[4:5], s[0:1], 0
  s_load_dwordx2 s[6:7], s[0:1], 40
  s_load_dwordx2 s[18:19], s[0:1], 56
  v_lshlrev_b32 v1, 4, v0
  v_mov_b32 v2, 0
  v_mov_b32 v3, 0
  v_mov_b32 v4, 0
  v_mov_b32 v5, 0""")
for i in range(3):
    e(f"  ds_write_b128 v1, v[2:5] offset:{i*8192}")
e(f"""  v_cmp_gt_u32 vcc, 80, v0
  s_and_saveexec_b64 s[20:21], vcc
  ds_write_b128 v1, v[2:5] offset:24576
  s_mov_b64 exec, s[20:21]
  v_cmp_gt_u32 vcc, 4, v0
  s_and_saveexec_b64 s[20:21], vcc
  v_lshlrev_b32 v6, 3, v0
  v_mov_b32 v2, 0x01000000
  ds_write_b64 v6, v[2:3] offset:{DUMMY}
  s_mov_b64 exec, s[20:21]
  s_waitcnt lgkmcnt(0)""")
srd(8,4,5,6400000)
srd(12,6,7,6400000)
srd(40,18,19,OFF_WF+16384)
e(f"""  s_mov_b32 s44, s18
  s_mov_b32 s45, s19
  s_mov_b32 s46, {OFF_REC+G*CHB}
  s_mov_b32 s47, 0x00020000
  s_lshl_b32 s3, s2, 2
  v_lshlrev_b32 v4, 11, v0
  v_cmp_gt_u32 vcc, 256, v0
  s_and_saveexec_b64 s[20:21], vcc
  buffer_load_dwordx2 v[100:101], v4, s[44:47], s3 offen
  s_mov_b64 exec, s[20:21]
  v_lshrrev_b32 v4, 6, v0
  v_and_b32 v5, 63, v0
  s_mov_b32 s48, 0x01010101
  s_mov_b32 s49, 0x01010101
  v_readfirstlane_b32 s24, v4
  v_and_b32 v93, 7, v5
  v_lshlrev_b32 v94, 5, v93          ; (lane&7)*32
  v_lshlrev_b32 v93, 4, v93          ; (lane&7)*16
  v_mov_b32 v95, {NEXT}
  v_mov_b32 v96, 1
  v_lshlrev_b32 v7, 3, v0            ; tid*8
  v_and_b32 v9, 15, v5
  s_lshl_b32 s29, s24, 4
  v_add_u32 v9, s29, v9
  v_lshrrev_b32 v10, 4, v5          ; q
  s_mul_i32 s30, s2, 12800
  v_lshlrev_b32 v11, 7, v9
  v_lshl_add_u32 v12, v10, 4, v11
  v_cmp_gt_u32 vcc, 100, v9
  s_and_saveexec_b64 s[20:21], vcc
  buffer_load_dwordx4 v[106:109], v12, s[8:11], s30 offen
  buffer_load_dwordx4 v[110:113], v12, s[8:11], s30 offen offset:64
  s_mov_b64 exec, s[20:21]
  v_cmp_gt_u32 vcc, 256, v0
  s_and_saveexec_b64 s[20:21], vcc
  s_cbranch_execz L_k4_nos1
  s_waitcnt vmcnt(2)
  v_sub_u32 v102, v101, v100         ; cnt
  v_mov_b32 v103, v102""")
for ctl in DPPS:
    e(f"  s_nop 1\n  v_add_u32_dpp v103, v103, v103 {ctl}")
e(f"""  s_nop 1
  v_lshlrev_b32 v4, 2, v4
  v_cmp_eq_u32 vcc, 63, v5
  s_and_saveexec_b64 s[54:55], vcc
  ds_write_b32 v4, v103 offset:{WT}
  s_mov_b64 exec, s[54:55]
L_k4_nos1:
  s_mov_b64 exec, s[20:21]
  s_waitcnt lgkmcnt(0)
  s_barrier
  v_mov_b32 v4, {WT}
  ds_read_b64 v[104:105], v4
  ds_read_b64 v[114:115], v4 offset:8
  s_waitcnt lgkmcnt(0)
  v_readfirstlane_b32 s32, v104
  v_readfirstlane_b32 s33, v105
  v_readfirstlane_b32 s34, v114
  v_readfirstlane_b32 s35, v115
  s_add_u32 s33, s33, s32
  s_add_u32 s34, s34, s33
  s_add_u32 s23, s35, s34            ; n
  s_mov_b32 s25, 0
  s_cmp_eq_u32 s24, 1
  s_cselect_b32 s25, s32, s25
  s_cmp_eq_u32 s24, 2
  s_cselect_b32 s25, s33, s25
  s_cmp_eq_u32 s24, 3
  s_cselect_b32 s25, s34, s25
  v_cmp_gt_u32 vcc, 256, v0
  s_and_saveexec_b64 s[20:21], vcc
  v_sub_u32 v103, v103, v102
  v_add_u32 v103, s25, v103          ; P[g]
  v_sub_u32 v104, v100, v103         ; ls - P
  v_lshlrev_b32 v104, 3, v104
  v_mul_u32_u24 v105, {CHB}, v0
  v_add_u32 v104, v104, v105
  v_lshlrev_b32 v4, 2, v0
  ds_write_b32 v4, v103 offset:{PA}
  ds_write_b32 v4, v104 offset:{BASEA}
  s_mov_b64 exec, s[20:21]
  s_mov_b32 s27, 0
  s_mov_b32 s26, {OFF_REC}
  s_waitcnt lgkmcnt(0)
  s_barrier
L_k4_chunk:
  s_sub_u32 s28, s23, s27            ; remaining
""")
for i in range(4):
    e(f"""  v_add_u32 v{22+i}, s27, v0
  v_add_u32 v{22+i}, {512*i}, v{22+i}
  v_mov_b32 v{26+i}, 0""")
for step in [128,64,32,16,8,4,2,1]:
    for i in range(4):
        e(f"""  v_add_u32 v{30+i}, {4*step}, v{26+i}
  ds_read_b32 v{34+i}, v{30+i} offset:{PA}""")
    for i in range(4):
        e(f"""  s_waitcnt lgkmcnt({3-i})
  v_cmp_le_u32 vcc, v{34+i}, v{22+i}
  v_cndmask_b32 v{26+i}, v{26+i}, v{30+i}, vcc""")
for i in range(4):
    e(f"  ds_read_b32 v{34+i}, v{26+i} offset:{BASEA}")
for i in range(4):
    e(f"""  v_add_u32 v6, {512*i}, v0
  v_cmp_gt_u32 vcc, s28, v6
  s_and_saveexec_b64 s[20:21], vcc
  s_waitcnt lgkmcnt({3-i})
  v_lshl_add_u32 v6, v{22+i}, 3, v{34+i}
  buffer_load_dwordx2 v[{10+2*i}:{11+2*i}], v6, s[44:47], s26 offen
  s_mov_b64 exec, s[20:21]""")
e(f"""  v_cmp_gt_u32 vcc, 128, v0
  s_and_saveexec_b64 s[20:21], vcc
  v_lshlrev_b32 v6, 2, v0
  v_mov_b32 v2, 0
  ds_write_b32 v6, v2 offset:{HIST}
  ds_write_b32 v95, v2
  s_mov_b64 exec, s[20:21]
  s_waitcnt lgkmcnt(0)
  s_barrier""")
for i in range(4):
    e(f"""  v_add_u32 v6, {512*i}, v0
  v_cmp_gt_u32 vcc, s28, v6
  s_and_saveexec_b64 s[20:21], vcc
  s_waitcnt vmcnt({3-i})
  v_and_b32 v6, 0x7f, v{11+2*i}
  v_lshlrev_b32 v6, 2, v6
  ds_add_rtn_u32 v{18+i}, v6, v96 offset:{HIST}
  s_mov_b64 exec, s[20:21]""")
e(f"""  s_waitcnt lgkmcnt(0)
  s_barrier
  s_cmp_lg_u32 s24, 0
  s_cbranch_scc1 L_k4_noscan
  v_lshlrev_b32 v6, 3, v5
  ds_read_b64 v[22:23], v6 offset:{HIST}
  v_lshlrev_b32 v24, 1, v5           ; j0
  s_waitcnt lgkmcnt(0)
  v_add_u32 v25, 3, v22
  v_and_b32 v25, -4, v25
  v_max_u32 v25, 4, v25
  v_add_u32 v26, 3, v23
  v_and_b32 v26, -4, v26
  v_max_u32 v26, 4, v26
  v_cmp_gt_u32 vcc, 100, v24
  v_cndmask_b32 v25, 0, v25, vcc
  v_cndmask_b32 v26, 0, v26, vcc
  v_lshlrev_b32 v25, 3, v25          ; bytes
  v_lshlrev_b32 v26, 3, v26
  v_add_u32 v27, v25, v26
  v_mov_b32 v28, v27
  s_nop 1
  v_add_u32_dpp v28, v28, v28 row_shr:1 row_mask:0xf bank_mask:0xf bound_ctrl:0
  s_nop 1
  v_add_u32_dpp v28, v28, v28 row_shr:2 row_mask:0xf bank_mask:0xf bound_ctrl:0
  s_nop 1
  v_add_u32_dpp v28, v28, v28 row_shr:4 row_mask:0xf bank_mask:0xf bound_ctrl:0
  s_nop 1
  v_add_u32_dpp v28, v28, v28 row_shr:8 row_mask:0xf bank_mask:0xf bound_ctrl:0
  s_nop 1
  v_add_u32_dpp v28, v28, v28 row_bcast:15 row_mask:0xa bank_mask:0xf
  s_nop 1
  v_add_u32_dpp v28, v28, v28 row_bcast:31 row_mask:0xc bank_mask:0xf
  s_nop 1
  v_sub_u32 v28, v28, v27
  v_add_u32 v28, {SORTED}, v28       ; start0
  v_add_u32 v29, v28, v25
  v_mov_b32 v30, v29
  v_add_u32 v31, v29, v26            ; end1
  v_cmp_eq_u32 vcc, 50, v5
  v_mov_b32 v6, {DUMMY}
  v_mov_b32 v8, {DUMMY+32}
  v_cndmask_b32 v28, v28, v6, vcc
  v_cndmask_b32 v29, v29, v8, vcc
  v_lshlrev_b32 v6, 4, v5
  ds_write_b128 v6, v[28:31] offset:{ST}
  v_mov_b32 v2, 0x01000000
  v_mov_b32 v3, 0
  v_cmp_gt_u32 vcc, 50, v5
  s_and_b64 exec, exec, vcc""")
for h in range(2):
    for k in range(4):
        e(f"""  v_lshl_add_u32 v6, v{22+h}, 3, v{28+2*h}
  v_add_u32 v6, {8*k}, v6
  v_cmp_gt_u32 vcc, v{29+2*h}, v6
  s_and_saveexec_b64 s[20:21], vcc
  ds_write_b64 v6, v[2:3]
  s_mov_b64 exec, s[20:21]""")
e(f"""  s_mov_b64 exec, -1
L_k4_noscan:
  s_waitcnt lgkmcnt(0)
  s_barrier""")
for i in range(4):
    e(f"""  v_and_b32 v6, 0x7f, v{11+2*i}
  v_lshlrev_b32 v6, 3, v6
  ds_read_b32 v{22+i}, v6 offset:{ST}""")
for i in range(4):
    e(f"""  v_add_u32 v6, {512*i}, v0
  v_cmp_gt_u32 vcc, s28, v6
  s_and_saveexec_b64 s[20:21], vcc
  s_waitcnt lgkmcnt({3-i})
  v_lshl_add_u32 v6, v{18+i}, 3, v{22+i}
  ds_write_b64 v6, v[{10+2*i}:{11+2*i}]
  s_mov_b64 exec, s[20:21]""")
e(f"""  s_waitcnt lgkmcnt(0)
  s_barrier
  v_mov_b32 v88, 0
  v_mov_b32 v89, 0""")
for r in range(8): e(f"  v_mov_b32 v{80+r}, 0")
lab=[0]
def issue(X):
    d = 32 if X=='A' else 48; w = 64 if X=='A' else 68; n = 91 if X=='A' else 92; sl = 50 if X=='A' else 52
    lab[0]+=1
    e(f"""  v_cmp_eq_u32 vcc, v88, v89
  s_and_saveexec_b64 s[20:21], vcc
  s_cbranch_execz L_k4_ng{lab[0]}
  s_mov_b64 s[54:55], exec
  s_and_b64 exec, exec, s[48:49]
  ds_add_rtn_u32 v97, v95, v96
  s_mov_b64 exec, s[54:55]
  s_waitcnt lgkmcnt(0)
  ds_swizzle_b32 v97, v97 offset:0x18
  s_waitcnt lgkmcnt(0)
  v_min_u32 v97, 100, v97
  v_lshlrev_b32 v98, 3, v97
  ds_read_b64 v[88:89], v98 offset:{ST}
  v_lshl_add_u32 v90, v97, 8, v94
  s_waitcnt lgkmcnt(0)
L_k4_ng{lab[0]}:
  s_mov_b64 exec, s[20:21]
  ds_read_b128 v[72:75], v88
  ds_read_b128 v[76:79], v88 offset:16
  v_add_u32 v88, 32, v88
  v_mov_b32 v{n}, v90
  v_cmp_eq_u32 s[{sl}:{sl+1}], v88, v89
  s_waitcnt lgkmcnt(0)""")
    for k in range(4):
        e(f"""  v_lshl_add_u32 v97, v{72+2*k}, 7, v93
  buffer_load_dwordx4 v[{d+4*k}:{d+4*k+3}], v97, s[8:11], 0 offen
  v_mov_b32 v{w+k}, v{73+2*k}""")
def consume(X):
    d = 32 if X=='A' else 48; w = 64 if X=='A' else 68; n = 91 if X=='A' else 92; sl = 50 if X=='A' else 52
    lab[0]+=1
    for k in range(4):
        e(f"""  s_waitcnt vmcnt({7-k})
  v_lshrrev_b32 v97, 16, v{w+k}
  v_and_b32 v98, 0xffff0000, v{w+k}""")
        for j in range(4):
            e(f"""  v_dot2c_f32_bf16 v{80+2*j}, v{d+4*k+j}, v97
  v_dot2c_f32_bf16 v{81+2*j}, v{d+4*k+j}, v98""")
    e(f"""  s_and_saveexec_b64 s[20:21], s[{sl}:{sl+1}]
  s_cbranch_execz L_k4_nf{lab[0]}
  ds_read_b128 v[72:75], v{n}
  ds_read_b128 v[76:79], v{n} offset:16
  s_waitcnt lgkmcnt(0)""")
    for r in range(8): e(f"  v_add_f32 v{72+r}, v{72+r}, v{80+r}")
    e(f"""  ds_write_b128 v{n}, v[72:75]
  ds_write_b128 v{n}, v[76:79] offset:16""")
    for r in range(8): e(f"  v_mov_b32 v{80+r}, 0")
    e(f"""L_k4_nf{lab[0]}:
  s_mov_b64 exec, s[20:21]""")
e(f"  v_add_u32 v99, 25600, v94")
issue('A')
e("L_k4_loop:")
issue('B'); consume('A')
e("""  v_cmp_ne_u32 vcc, v99, v92
  s_cbranch_vccz L_k4_gdone""")
issue('A'); consume('B')
e("""  v_cmp_ne_u32 vcc, v99, v91
  s_cbranch_vccnz L_k4_loop
L_k4_gdone:
  s_waitcnt lgkmcnt(0)
  s_barrier""")
e(f"""  s_add_u32 s27, s27, {CAP}
  s_cmp_lt_u32 s27, s23
  s_cbranch_scc1 L_k4_chunk
  s_cmp_ge_u32 s24, 7
  s_cbranch_scc1 L_k4_end
  v_lshlrev_b32 v8, 4, v5
  s_mov_b32 s3, {OFF_WF}
  v_and_b32 v9, 15, v5
  s_lshl_b32 s29, s24, 4
  v_add_u32 v9, s29, v9
  v_lshrrev_b32 v10, 4, v5          ; q
  v_lshlrev_b32 v11, 7, v9
  s_waitcnt vmcnt(0)
  v_mov_b32 v16, v106
  v_mov_b32 v17, v107
  v_mov_b32 v18, v108
  v_mov_b32 v19, v109
  v_mov_b32 v20, v110
  v_mov_b32 v21, v111
  v_mov_b32 v22, v112
  v_mov_b32 v23, v113""")
for f in range(16):
    e(f"  buffer_load_dwordx4 v[{64+4*f}:{67+4*f}], v8, s[40:43], s3 offen offset:{f*1024}") if f<4 else \
    e(f"  s_mov_b32 s29, {OFF_WF+f*1024}\n  buffer_load_dwordx4 v[{64+4*f}:{67+4*f}], v8, s[40:43], s29 offen")
e("""  v_lshlrev_b32 v13, 8, v9
  v_lshl_add_u32 v13, v10, 5, v13
  ds_read_b128 v[24:27], v13
  ds_read_b128 v[28:31], v13 offset:16
  ds_read_b128 v[32:35], v13 offset:128
  ds_read_b128 v[36:39], v13 offset:144
  s_waitcnt lgkmcnt(0)""")
for h in range(2):
    for j in range(4):
        e(f"  v_cvt_pk_bf16_f32 v{40+4*h+j}, v{24+8*h+2*j}, v{25+8*h+2*j}")
e("  s_waitcnt vmcnt(0)")
for mt in range(4):
    for r in range(4): e(f"  v_mov_b32 v{48+4*mt+r}, 0")
e("  s_nop 1")
bsrc=[16,20,40,44]
for ks in range(4):
    for mt in range(4):
        f=mt*4+ks
        e(f"  v_mfma_f32_16x16x32_bf16 v[{48+4*mt}:{51+4*mt}], v[{64+4*f}:{67+4*f}], v[{bsrc[ks]}:{bsrc[ks]+3}], v[{48+4*mt}:{51+4*mt}]")
e("""  s_nop 7
  s_nop 7
  v_lshl_add_u32 v12, v10, 3, v11
  v_cmp_gt_u32 vcc, 100, v9
  s_and_saveexec_b64 s[20:21], vcc""")
for mt in range(4):
    e(f"""  v_cvt_pk_bf16_f32 v{24+2*mt}, v{48+4*mt}, v{49+4*mt}
  v_cvt_pk_bf16_f32 v{25+2*mt}, v{50+4*mt}, v{51+4*mt}
  buffer_store_dwordx2 v[{24+2*mt}:{25+2*mt}], v12, s[12:15], s30 offen offset:{mt*32}""")
e("""L_k4_end:
  s_endpgm""")
e('.section .rodata,"a"')
for name,nv in (("k1_sort_kernel",64),("k4_main_kernel",128)):
    e(f""".p2align 6
.amdhsa_kernel {name}
  .amdhsa_next_free_vgpr {nv}
  .amdhsa_next_free_sgpr 80
  .amdhsa_accum_offset {nv}
  .amdhsa_group_segment_fixed_size 0
  .amdhsa_kernarg_size 64
  .amdhsa_user_sgpr_count 2
  .amdhsa_user_sgpr_kernarg_segment_ptr 1
  .amdhsa_system_sgpr_workgroup_id_x 1
.end_amdhsa_kernel""")
open('standalone__spectral_conv_chebnet__graph.s','w').write("\n".join(o)+"\n")
```

```python
HDR = open('standalone__spectral_conv_chebnet__graph.s.ref').read().split('; Override launch')[0]
G=256; CH=3125; B=500; R=100; CHB=25088
OFF_C=0; OFF_WF=0x80000; OFF_REC=0x100000
o=[]
def e(s): o.append(s)
e(HDR.rstrip())
e("; @launch kernel=k1_sort_kernel grid=(257,1,1) block=(1024,1,1) lds=27136")
e("; @launch kernel=k4_main_kernel grid=(500,1,1) block=(512,1,1) lds=65792")
e('.amdgcn_target "amdgcn-amd-amdhsa--gfx950"')
e('.text')
def srd(d, lo, hi, size):
    e(f"  s_mov_b32 s{d}, s{lo}\n  s_mov_b32 s{d+1}, s{hi}\n  s_mov_b32 s{d+2}, {size}\n  s_mov_b32 s{d+3}, 0x00020000")
def head(name):
    e(f".globl {name}\n.p2align 8\n.type {name},@function\n{name}:")
DPPS=["row_shr:1 row_mask:0xf bank_mask:0xf bound_ctrl:0","row_shr:2 row_mask:0xf bank_mask:0xf bound_ctrl:0","row_shr:4 row_mask:0xf bank_mask:0xf bound_ctrl:0","row_shr:8 row_mask:0xf bank_mask:0xf bound_ctrl:0","row_bcast:15 row_mask:0xa bank_mask:0xf","row_bcast:31 row_mask:0xc bank_mask:0xf"]
CNT=0; STAGE=2048
head("k1_sort_kernel")
e("""  s_cmp_gt_u32 s2, 256
  s_cbranch_scc1 L_k1_end
  s_load_dwordx4 s[4:7], s[0:1], 8
  s_load_dwordx4 s[16:19], s[0:1], 24   ; ew, w
  s_load_dwordx2 s[22:23], s[0:1], 56   ; ws
  s_cmp_eq_u32 s2, 256
  s_cbranch_scc1 L_k1_wt
  v_lshlrev_b32 v1, 2, v0
  v_lshlrev_b32 v2, 1, v0
  v_mov_b32 v4, 0
  v_cmp_gt_u32 vcc, 512, v0
  s_and_saveexec_b64 s[20:21], vcc
  ds_write_b32 v1, v4
  s_mov_b64 exec, s[20:21]
  s_waitcnt lgkmcnt(0)""")
srd(8,4,5,3200000)
srd(12,6,7,3200000)
srd(36,16,17,1600000)
srd(40,22,23,OFF_REC+G*CHB)
e("  s_mul_i32 s3, s2, 12500\n  s_mul_i32 s44, s2, 6250")
for i in range(4):
    e(f"  s_add_u32 s{24+i}, s3, {i*4096}")
    e(f"  s_add_u32 s{46+i}, s44, {i*2048}")
e("  v_cmp_gt_u32 vcc, 53, v0")
for i in range(4):
    if i==3: e("  s_and_saveexec_b64 s[20:21], vcc")
    e(f"  buffer_load_dword v{10+i}, v1, s[12:15], s{24+i} offen")
    e(f"  buffer_load_dword v{14+i}, v1, s[8:11], s{24+i} offen")
    e(f"  buffer_load_ushort v{18+i}, v2, s[36:39], s{46+i} offen")
e("""  s_mov_b64 exec, s[20:21]
  v_mov_b32 v3, 1
  s_barrier""")
for i in range(4):
    if i==3: e("  s_and_saveexec_b64 s[20:21], vcc")
    e(f"""  s_waitcnt vmcnt({3*(3-i)+2})
  v_mul_u32_u24 v4, 83887, v{10+i}
  v_lshrrev_b32 v4, 23, v4
  v_lshlrev_b32 v{22+i}, 2, v4
  ds_add_rtn_u32 v{26+i}, v{22+i}, v3 offset:{CNT}
  v_mul_u32_u24 v4, 100, v4
  v_sub_u32 v{10+i}, v{10+i}, v4""")
e(f"""  s_mov_b64 exec, s[20:21]
  s_waitcnt lgkmcnt(0)
  s_barrier
  v_cmp_gt_u32 vcc, 64, v0
  s_and_saveexec_b64 s[20:21], vcc
  s_cbranch_execz L_k1_noscan
  v_lshlrev_b32 v4, 5, v0
  ds_read_b128 v[40:43], v4 offset:{CNT}
  ds_read_b128 v[44:47], v4 offset:{CNT+16}
  v_mov_b32 v48, 0
  s_waitcnt lgkmcnt(0)""")
for j in range(8):
    e(f"  v_add_u32 v{49+j}, v{48+j}, v{40+j}")
e("  v_mov_b32 v58, v56")
for ctl in DPPS:
    e(f"  s_nop 1\n  v_add_u32_dpp v58, v58, v58 {ctl}")
e("  s_nop 1\n  v_sub_u32 v58, v58, v56")
for j in range(8):
    e(f"  v_add_u32 v{48+j}, v{48+j}, v58")
e(f"""  ds_write_b128 v4, v[48:51] offset:{CNT}
  ds_write_b128 v4, v[52:55] offset:{CNT+16}
  s_lshl_b32 s3, s2, 11
  buffer_store_dwordx4 v[48:51], v4, s[40:43], s3 offen
  buffer_store_dwordx4 v[52:55], v4, s[40:43], s3 offen offset:16
L_k1_noscan:
  s_mov_b64 exec, s[20:21]
  s_waitcnt lgkmcnt(0)
  s_barrier
  v_cmp_gt_u32 vcc, 53, v0""")
for i in range(4):
    if i==3: e("  s_and_saveexec_b64 s[20:21], vcc")
    e(f"  ds_read_b32 v{30+i}, v{22+i} offset:{CNT}")
e("  s_waitcnt vmcnt(0) lgkmcnt(0)")
for i in [3,0,1,2]:
    e(f"""  v_add_u32 v4, v{30+i}, v{26+i}
  v_lshlrev_b32 v4, 3, v4
  v_lshl_or_b32 v{35+2*i}, v{18+i}, 16, v{10+i}
  v_mov_b32 v{34+2*i}, v{14+i}
  ds_write_b64 v4, v[{34+2*i}:{35+2*i}] offset:{STAGE}""")
    if i==3: e("  s_mov_b64 exec, s[20:21]")
e(f"""  s_waitcnt lgkmcnt(0)
  s_barrier
  v_lshlrev_b32 v4, 4, v0
  s_mul_i32 s3, s2, {CHB}
  s_add_u32 s3, s3, {OFF_REC}
  s_add_u32 s24, s3, 16384
  ds_read_b128 v[40:43], v4 offset:{STAGE}
  v_cmp_gt_u32 vcc, 539, v0
  s_and_saveexec_b64 s[20:21], vcc
  ds_read_b128 v[44:47], v4 offset:{STAGE+16384}
  s_waitcnt lgkmcnt(0)
  buffer_store_dwordx4 v[44:47], v4, s[40:43], s24 offen
  s_mov_b64 exec, s[20:21]
  buffer_store_dwordx4 v[40:43], v4, s[40:43], s3 offen
  s_endpgm
L_k1_wt:
  s_waitcnt lgkmcnt(0)""")
srd(8,18,19,16384)
srd(12,22,23,OFF_WF+16384)
e("""  v_lshrrev_b32 v4, 8, v0      ; mt
  v_bfe_u32 v5, v0, 6, 2       ; ks
  v_and_b32 v6, 15, v0
  v_bfe_u32 v7, v0, 4, 2       ; l>>4
  v_lshrrev_b32 v8, 2, v6      ; m>>2
  v_and_b32 v6, 3, v6          ; m&3
  v_lshl_add_u32 v6, v4, 2, v6 ; + mt*4
  v_lshl_add_u32 v6, v8, 4, v6 ; + (m>>2)*16 -> n
  v_lshlrev_b32 v5, 5, v5
  v_lshl_add_u32 v5, v7, 3, v5 ; k
  v_lshlrev_b32 v5, 7, v5      ; k*128
  v_lshl_add_u32 v5, v6, 1, v5 ; + n*2""")
for j in range(8):
    e(f"  buffer_load_ushort v{10+j}, v5, s[8:11], 0 offen offset:{j*128}")
e("  s_waitcnt vmcnt(0)")
for j in range(4):
    e(f"  v_lshl_or_b32 v{20+j}, v{11+2*j}, 16, v{10+2*j}")
e(f"""  v_lshlrev_b32 v4, 4, v0
  s_mov_b32 s3, {OFF_WF}
  buffer_store_dwordx4 v[20:23], v4, s[12:15], s3 offen
L_k1_end:
  s_endpgm""")
T1=0; HIST=25856; ST=26368; NEXT=27392; DUMMY=27424; SORTED=27456; CAP=2048
LDS4=65792; WL=49408; PA=47104; BASEA=48160; WT=48128
head("k4_main_kernel")
e(f"""  s_cmp_ge_u32 s2, 500
  s_cbranch_scc1 L_k4_end
  s_load_dwordx2 s[4:5], s[0:1], 0
  s_load_dwordx2 s[6:7], s[0:1], 40
  s_load_dwordx2 s[18:19], s[0:1], 56
  v_lshlrev_b32 v1, 4, v0
  v_mov_b32 v2, 0
  v_mov_b32 v3, 0
  v_mov_b32 v4, 0
  v_mov_b32 v5, 0""")
for i in range(3):
    e(f"  ds_write_b128 v1, v[2:5] offset:{i*8192}")
e(f"""  v_cmp_gt_u32 vcc, 80, v0
  s_and_saveexec_b64 s[20:21], vcc
  ds_write_b128 v1, v[2:5] offset:24576
  s_mov_b64 exec, s[20:21]
  v_cmp_gt_u32 vcc, 4, v0
  s_and_saveexec_b64 s[20:21], vcc
  v_lshlrev_b32 v6, 3, v0
  v_mov_b32 v2, 0x01000000
  ds_write_b64 v6, v[2:3] offset:{DUMMY}
  s_mov_b64 exec, s[20:21]
  s_waitcnt lgkmcnt(0)""")
srd(8,4,5,6400000)
srd(12,6,7,6400000)
srd(40,18,19,OFF_WF+16384)
e(f"""  s_mov_b32 s44, s18
  s_mov_b32 s45, s19
  s_mov_b32 s46, {OFF_REC+G*CHB}
  s_mov_b32 s47, 0x00020000
  s_lshl_b32 s3, s2, 2
  v_lshlrev_b32 v4, 11, v0
  v_cmp_gt_u32 vcc, 256, v0
  s_and_saveexec_b64 s[20:21], vcc
  buffer_load_dwordx2 v[100:101], v4, s[44:47], s3 offen
  s_mov_b64 exec, s[20:21]
  s_mov_b32 s3, {OFF_WF}
  s_mov_b32 s29, {OFF_WF+8192}
  buffer_load_dwordx4 v[116:119], v1, s[40:43], s3 offen
  buffer_load_dwordx4 v[120:123], v1, s[40:43], s29 offen
  v_lshrrev_b32 v4, 6, v0
  v_and_b32 v5, 63, v0
  s_mov_b32 s48, 0x01010101
  s_mov_b32 s49, 0x01010101
  v_readfirstlane_b32 s24, v4
  v_and_b32 v93, 7, v5
  v_lshlrev_b32 v94, 5, v93          ; (lane&7)*32
  v_lshlrev_b32 v93, 4, v93          ; (lane&7)*16
  v_mov_b32 v95, {NEXT}
  v_mov_b32 v96, 1
  v_lshlrev_b32 v7, 3, v0            ; tid*8
  v_and_b32 v9, 15, v5
  s_lshl_b32 s29, s24, 4
  v_add_u32 v9, s29, v9
  v_lshrrev_b32 v10, 4, v5          ; q
  s_mul_i32 s30, s2, 12800
  v_lshlrev_b32 v11, 7, v9
  v_lshl_add_u32 v12, v10, 4, v11
  v_cmp_gt_u32 vcc, 100, v9
  s_and_saveexec_b64 s[20:21], vcc
  buffer_load_dwordx4 v[106:109], v12, s[8:11], s30 offen
  buffer_load_dwordx4 v[110:113], v12, s[8:11], s30 offen offset:64
  s_mov_b64 exec, s[20:21]
  v_cmp_gt_u32 vcc, 256, v0
  s_and_saveexec_b64 s[20:21], vcc
  s_cbranch_execz L_k4_nos1
  s_waitcnt vmcnt(4)
  v_sub_u32 v102, v101, v100         ; cnt
  v_mov_b32 v103, v102""")
for ctl in DPPS:
    e(f"  s_nop 1\n  v_add_u32_dpp v103, v103, v103 {ctl}")
e(f"""  s_nop 1
  v_lshlrev_b32 v4, 2, v4
  v_cmp_eq_u32 vcc, 63, v5
  s_and_saveexec_b64 s[54:55], vcc
  ds_write_b32 v4, v103 offset:{WT}
  s_mov_b64 exec, s[54:55]
L_k4_nos1:
  s_mov_b64 exec, s[20:21]
  s_waitcnt lgkmcnt(0)
  s_barrier
  v_mov_b32 v4, {WT}
  ds_read_b64 v[104:105], v4
  ds_read_b64 v[114:115], v4 offset:8
  s_waitcnt lgkmcnt(0)
  v_readfirstlane_b32 s32, v104
  v_readfirstlane_b32 s33, v105
  v_readfirstlane_b32 s34, v114
  v_readfirstlane_b32 s35, v115
  s_add_u32 s33, s33, s32
  s_add_u32 s34, s34, s33
  s_add_u32 s23, s35, s34            ; n
  s_mov_b32 s25, 0
  s_cmp_eq_u32 s24, 1
  s_cselect_b32 s25, s32, s25
  s_cmp_eq_u32 s24, 2
  s_cselect_b32 s25, s33, s25
  s_cmp_eq_u32 s24, 3
  s_cselect_b32 s25, s34, s25
  v_cmp_gt_u32 vcc, 256, v0
  s_and_saveexec_b64 s[20:21], vcc
  v_sub_u32 v103, v103, v102
  v_add_u32 v103, s25, v103          ; P[g]
  v_sub_u32 v104, v100, v103         ; ls - P
  v_lshlrev_b32 v104, 3, v104
  v_mul_u32_u24 v105, {CHB}, v0
  v_add_u32 v104, v104, v105
  v_lshlrev_b32 v4, 2, v0
  ds_write_b32 v4, v103 offset:{PA}
  ds_write_b32 v4, v104 offset:{BASEA}
  s_mov_b64 exec, s[20:21]
  s_mov_b32 s27, 0
  s_mov_b32 s26, {OFF_REC}
  s_waitcnt lgkmcnt(0)
  s_barrier
L_k4_chunk:
  s_sub_u32 s28, s23, s27            ; remaining
""")
for i in range(4):
    e(f"""  v_add_u32 v{22+i}, s27, v0
  v_add_u32 v{22+i}, {512*i}, v{22+i}
  v_mov_b32 v{26+i}, 0""")
for step in [128,64,32,16,8,4,2,1]:
    for i in range(4):
        e(f"""  v_add_u32 v{30+i}, {4*step}, v{26+i}
  ds_read_b32 v{34+i}, v{30+i} offset:{PA}""")
    for i in range(4):
        e(f"""  s_waitcnt lgkmcnt({3-i})
  v_cmp_le_u32 vcc, v{34+i}, v{22+i}
  v_cndmask_b32 v{26+i}, v{26+i}, v{30+i}, vcc""")
for i in range(4):
    e(f"  ds_read_b32 v{34+i}, v{26+i} offset:{BASEA}")
for i in range(4):
    e(f"""  v_add_u32 v6, {512*i}, v0
  v_cmp_gt_u32 vcc, s28, v6
  s_and_saveexec_b64 s[20:21], vcc
  s_waitcnt lgkmcnt({3-i})
  v_lshl_add_u32 v6, v{22+i}, 3, v{34+i}
  buffer_load_dwordx2 v[{10+2*i}:{11+2*i}], v6, s[44:47], s26 offen
  s_mov_b64 exec, s[20:21]""")
e(f"""  v_cmp_gt_u32 vcc, 128, v0
  s_and_saveexec_b64 s[20:21], vcc
  v_lshlrev_b32 v6, 2, v0
  v_mov_b32 v2, 0
  ds_write_b32 v6, v2 offset:{HIST}
  ds_write_b32 v95, v2
  s_mov_b64 exec, s[20:21]
  s_waitcnt lgkmcnt(0)
  s_barrier""")
for i in range(4):
    e(f"""  v_add_u32 v6, {512*i}, v0
  v_cmp_gt_u32 vcc, s28, v6
  s_and_saveexec_b64 s[20:21], vcc
  s_waitcnt vmcnt({3-i})
  v_and_b32 v6, 0x7f, v{11+2*i}
  v_lshlrev_b32 v6, 2, v6
  ds_add_rtn_u32 v{18+i}, v6, v96 offset:{HIST}
  s_mov_b64 exec, s[20:21]""")
e(f"""  s_waitcnt lgkmcnt(0)
  s_barrier
  s_cmp_lg_u32 s24, 0
  s_cbranch_scc1 L_k4_noscan
  v_lshlrev_b32 v6, 3, v5
  ds_read_b64 v[22:23], v6 offset:{HIST}
  v_lshlrev_b32 v24, 1, v5           ; j0
  s_waitcnt lgkmcnt(0)
  v_add_u32 v25, 3, v22
  v_and_b32 v25, -4, v25
  v_max_u32 v25, 4, v25
  v_add_u32 v26, 3, v23
  v_and_b32 v26, -4, v26
  v_max_u32 v26, 4, v26
  v_cmp_gt_u32 vcc, 100, v24
  v_cndmask_b32 v25, 0, v25, vcc
  v_cndmask_b32 v26, 0, v26, vcc
  v_lshlrev_b32 v25, 3, v25          ; bytes
  v_lshlrev_b32 v26, 3, v26
  v_add_u32 v27, v25, v26
  v_mov_b32 v28, v27
  s_nop 1
  v_add_u32_dpp v28, v28, v28 row_shr:1 row_mask:0xf bank_mask:0xf bound_ctrl:0
  s_nop 1
  v_add_u32_dpp v28, v28, v28 row_shr:2 row_mask:0xf bank_mask:0xf bound_ctrl:0
  s_nop 1
  v_add_u32_dpp v28, v28, v28 row_shr:4 row_mask:0xf bank_mask:0xf bound_ctrl:0
  s_nop 1
  v_add_u32_dpp v28, v28, v28 row_shr:8 row_mask:0xf bank_mask:0xf bound_ctrl:0
  s_nop 1
  v_add_u32_dpp v28, v28, v28 row_bcast:15 row_mask:0xa bank_mask:0xf
  s_nop 1
  v_add_u32_dpp v28, v28, v28 row_bcast:31 row_mask:0xc bank_mask:0xf
  s_nop 1
  v_sub_u32 v28, v28, v27
  v_add_u32 v28, {SORTED}, v28       ; start0
  v_add_u32 v29, v28, v25
  v_mov_b32 v30, v29
  v_add_u32 v31, v29, v26            ; end1
  v_cmp_eq_u32 vcc, 50, v5
  v_mov_b32 v6, {DUMMY}
  v_mov_b32 v8, {DUMMY+32}
  v_cndmask_b32 v28, v28, v6, vcc
  v_cndmask_b32 v29, v29, v8, vcc
  v_lshlrev_b32 v6, 4, v5
  ds_write_b128 v6, v[28:31] offset:{ST}
  v_mov_b32 v2, 0x01000000
  v_mov_b32 v3, 0
  v_cmp_gt_u32 vcc, 50, v5
  s_and_b64 exec, exec, vcc""")
for h in range(2):
    for k in range(4):
        e(f"""  v_lshl_add_u32 v6, v{22+h}, 3, v{28+2*h}
  v_add_u32 v6, {8*k}, v6
  v_cmp_gt_u32 vcc, v{29+2*h}, v6
  s_and_saveexec_b64 s[20:21], vcc
  ds_write_b64 v6, v[2:3]
  s_mov_b64 exec, s[20:21]""")
e(f"""  s_mov_b64 exec, -1
L_k4_noscan:
  s_waitcnt lgkmcnt(0)
  s_barrier""")
for i in range(4):
    e(f"""  v_and_b32 v6, 0x7f, v{11+2*i}
  v_lshlrev_b32 v6, 3, v6
  ds_read_b32 v{22+i}, v6 offset:{ST}""")
for i in range(4):
    e(f"""  v_add_u32 v6, {512*i}, v0
  v_cmp_gt_u32 vcc, s28, v6
  s_and_saveexec_b64 s[20:21], vcc
  s_waitcnt lgkmcnt({3-i})
  v_lshl_add_u32 v6, v{18+i}, 3, v{22+i}
  ds_write_b64 v6, v[{10+2*i}:{11+2*i}]
  s_mov_b64 exec, s[20:21]""")
e(f"""  ds_write_b128 v1, v[116:119] offset:{WL}
  ds_write_b128 v1, v[120:123] offset:{WL+8192}
  s_waitcnt lgkmcnt(0)
  s_barrier
  v_mov_b32 v88, 0
  v_mov_b32 v89, 0""")
for r in range(8): e(f"  v_mov_b32 v{80+r}, 0")
lab=[0]
import sys
NB = int(sys.argv[1]) if len(sys.argv) > 1 else 3
OUT = sys.argv[2] if len(sys.argv) > 2 else 'standalone__spectral_conv_chebnet__graph.s'
DREG=[32,48,10]; WREG=[64,68,26]; NREG=[91,92,30]; SLAST=[50,52,56]
def issue(X):
    d = DREG[X]; w = WREG[X]; n = NREG[X]; sl = SLAST[X]
    lab[0]+=1
    e(f"""  v_cmp_eq_u32 vcc, v88, v89
  s_and_saveexec_b64 s[20:21], vcc
  s_cbranch_execz L_k4_ng{lab[0]}
  s_mov_b64 s[54:55], exec
  s_and_b64 exec, exec, s[48:49]
  ds_add_rtn_u32 v97, v95, v96
  s_mov_b64 exec, s[54:55]
  s_waitcnt lgkmcnt(0)
  ds_swizzle_b32 v97, v97 offset:0x18
  s_waitcnt lgkmcnt(0)
  v_min_u32 v97, 100, v97
  v_lshlrev_b32 v98, 3, v97
  ds_read_b64 v[88:89], v98 offset:{ST}
  v_lshl_add_u32 v90, v97, 8, v94
  s_waitcnt lgkmcnt(0)
L_k4_ng{lab[0]}:
  s_mov_b64 exec, s[20:21]
  ds_read_b128 v[72:75], v88
  ds_read_b128 v[76:79], v88 offset:16
  v_add_u32 v88, 32, v88
  v_mov_b32 v{n}, v90
  v_cmp_eq_u32 s[{sl}:{sl+1}], v88, v89
  s_waitcnt lgkmcnt(0)""")
    for k in range(4):
        e(f"""  v_lshl_add_u32 v97, v{72+2*k}, 7, v93
  buffer_load_dwordx4 v[{d+4*k}:{d+4*k+3}], v97, s[8:11], 0 offen
  v_mov_b32 v{w+k}, v{73+2*k}""")
def consume(X):
    d = DREG[X]; w = WREG[X]; n = NREG[X]; sl = SLAST[X]
    lab[0]+=1
    for k in range(4):
        e(f"""  s_waitcnt vmcnt({4*(NB-1)+3-k})
  v_lshrrev_b32 v97, 16, v{w+k}
  v_and_b32 v98, 0xffff0000, v{w+k}""")
        for j in range(4):
            e(f"""  v_dot2c_f32_bf16 v{80+2*j}, v{d+4*k+j}, v97
  v_dot2c_f32_bf16 v{81+2*j}, v{d+4*k+j}, v98""")
    e(f"""  s_and_saveexec_b64 s[20:21], s[{sl}:{sl+1}]
  s_cbranch_execz L_k4_nf{lab[0]}
  ds_read_b128 v[72:75], v{n}
  ds_read_b128 v[76:79], v{n} offset:16
  s_waitcnt lgkmcnt(0)""")
    for r in range(8): e(f"  v_add_f32 v{72+r}, v{72+r}, v{80+r}")
    e(f"""  ds_write_b128 v{n}, v[72:75]
  ds_write_b128 v{n}, v[76:79] offset:16""")
    for r in range(8): e(f"  v_mov_b32 v{80+r}, 0")
    e(f"""L_k4_nf{lab[0]}:
  s_mov_b64 exec, s[20:21]""")
e(f"  v_add_u32 v99, 25600, v94")
for X in range(NB-1): issue(X)
e("L_k4_loop:")
for X in range(NB):
    issue((X+NB-1)%NB); consume(X)
    e(f"  v_cmp_ne_u32 vcc, v99, v{NREG[(X+1)%NB]}")
    if X<NB-1: e("  s_cbranch_vccz L_k4_gdone")
    else: e("  s_cbranch_vccnz L_k4_loop")
e("""L_k4_gdone:
  s_waitcnt lgkmcnt(0)
  s_barrier""")
e(f"""  s_add_u32 s27, s27, {CAP}
  s_cmp_lt_u32 s27, s23
  s_cbranch_scc1 L_k4_chunk
  s_cmp_ge_u32 s24, 7
  s_cbranch_scc1 L_k4_end
  v_lshlrev_b32 v8, 4, v5
  s_mov_b32 s3, {OFF_WF}
  v_and_b32 v9, 15, v5
  s_lshl_b32 s29, s24, 4
  v_add_u32 v9, s29, v9
  v_lshrrev_b32 v10, 4, v5          ; q
  v_lshlrev_b32 v11, 7, v9
  s_waitcnt vmcnt(0)
  v_mov_b32 v16, v106
  v_mov_b32 v17, v107
  v_mov_b32 v18, v108
  v_mov_b32 v19, v109
  v_mov_b32 v20, v110
  v_mov_b32 v21, v111
  v_mov_b32 v22, v112
  v_mov_b32 v23, v113""")
for f in range(16):
    e(f"  ds_read_b128 v[{64+4*f}:{67+4*f}], v8 offset:{WL+f*1024}")
e("""  v_lshlrev_b32 v13, 8, v9
  v_lshl_add_u32 v13, v10, 5, v13
  ds_read_b128 v[24:27], v13
  ds_read_b128 v[28:31], v13 offset:16
  ds_read_b128 v[32:35], v13 offset:128
  ds_read_b128 v[36:39], v13 offset:144
  s_waitcnt lgkmcnt(0)""")
for h in range(2):
    for j in range(4):
        e(f"  v_cvt_pk_bf16_f32 v{40+4*h+j}, v{24+8*h+2*j}, v{25+8*h+2*j}")
e("  s_waitcnt vmcnt(0)")
for mt in range(4):
    for r in range(4): e(f"  v_mov_b32 v{48+4*mt+r}, 0")
e("  s_nop 1")
bsrc=[16,20,40,44]
for ks in range(4):
    for mt in range(4):
        f=mt*4+ks
        e(f"  v_mfma_f32_16x16x32_bf16 v[{48+4*mt}:{51+4*mt}], v[{64+4*f}:{67+4*f}], v[{bsrc[ks]}:{bsrc[ks]+3}], v[{48+4*mt}:{51+4*mt}]")
e("""  s_nop 7
  s_nop 7
  v_lshl_add_u32 v12, v10, 5, v11
  v_cmp_gt_u32 vcc, 100, v9
  s_and_saveexec_b64 s[20:21], vcc""")
for mt in range(4):
    e(f"""  v_cvt_pk_bf16_f32 v{24+2*mt}, v{48+4*mt}, v{49+4*mt}
  v_cvt_pk_bf16_f32 v{25+2*mt}, v{50+4*mt}, v{51+4*mt}""")
e("""  buffer_store_dwordx4 v[24:27], v12, s[12:15], s30 offen
  buffer_store_dwordx4 v[28:31], v12, s[12:15], s30 offen offset:16""")
e("""L_k4_end:
  s_endpgm""")
e('.section .rodata,"a"')
for name,nv in (("k1_sort_kernel",64),("k4_main_kernel",128)):
    e(f""".p2align 6
.amdhsa_kernel {name}
  .amdhsa_next_free_vgpr {nv}
  .amdhsa_next_free_sgpr 80
  .amdhsa_accum_offset {nv}
  .amdhsa_group_segment_fixed_size 0
  .amdhsa_kernarg_size 64
  .amdhsa_user_sgpr_count 2
  .amdhsa_user_sgpr_kernarg_segment_ptr 1
  .amdhsa_system_sgpr_workgroup_id_x 1
.end_amdhsa_kernel""")
open(OUT,'w').write("\n".join(o)+"\n")
```

```python
import sys
HDR = open('standalone__spectral_conv_chebnet__graph.s.ref').read().split('; Override launch')[0]
OUT = sys.argv[1] if len(sys.argv) > 1 else 'standalone__spectral_conv_chebnet__graph.s'
G=256; CH=3125; R=200; B=250; CHB=25088
OFF_C=0; OFF_WF=0x80000; OFF_REC=0x100000
WS_END=OFF_REC+G*CHB
o=[]
def e(s): o.append(s)
T1=0; HIST=51456; ST=52480; NEXT=54528; DUMMY=54560; SORTED=54592; CAP=4096
PA=93760; WT=94784; BASEA=94816; WL=95840; LDS4=112224
JROW=R*256
CNT=0; STAGE=1024; LDS1=1024+25088
e(HDR.rstrip())
e(f"; @launch kernel=k1_sort_kernel grid=(257,1,1) block=(1024,1,1) lds={LDS1}")
e(f"; @launch kernel=k4_main_kernel grid=(250,1,1) block=(1024,1,1) lds={LDS4}")
e('.amdgcn_target "amdgcn-amd-amdhsa--gfx950"')
e('.text')
def srd(d, lo, hi, size):
    e(f"  s_mov_b32 s{d}, s{lo}\n  s_mov_b32 s{d+1}, s{hi}\n  s_mov_b32 s{d+2}, {size}\n  s_mov_b32 s{d+3}, 0x00020000")
def head(name):
    e(f".globl {name}\n.p2align 8\n.type {name},@function\n{name}:")
DPPS=["row_shr:1 row_mask:0xf bank_mask:0xf bound_ctrl:0","row_shr:2 row_mask:0xf bank_mask:0xf bound_ctrl:0","row_shr:4 row_mask:0xf bank_mask:0xf bound_ctrl:0","row_shr:8 row_mask:0xf bank_mask:0xf bound_ctrl:0","row_bcast:15 row_mask:0xa bank_mask:0xf","row_bcast:31 row_mask:0xc bank_mask:0xf"]
def dppscan(v):
    for ctl in DPPS:
        e(f"  s_nop 1\n  v_add_u32_dpp v{v}, v{v}, v{v} {ctl}")
    e("  s_nop 1")
head("k1_sort_kernel")
e("""  s_cmp_gt_u32 s2, 256
  s_cbranch_scc1 L_k1_end
  s_load_dwordx4 s[4:7], s[0:1], 8
  s_load_dwordx4 s[16:19], s[0:1], 24   ; ew, w
  s_load_dwordx2 s[22:23], s[0:1], 56   ; ws
  s_cmp_eq_u32 s2, 256
  s_cbranch_scc1 L_k1_wt
  v_lshlrev_b32 v1, 2, v0
  v_lshlrev_b32 v2, 1, v0
  v_mov_b32 v4, 0
  v_cmp_gt_u32 vcc, 256, v0
  s_and_saveexec_b64 s[20:21], vcc
  ds_write_b32 v1, v4
  s_mov_b64 exec, s[20:21]
  s_waitcnt lgkmcnt(0)""")
srd(8,4,5,3200000)
srd(12,6,7,3200000)
srd(36,16,17,1600000)
srd(40,22,23,WS_END)
e("  s_mul_i32 s3, s2, 12500\n  s_mul_i32 s44, s2, 6250")
for i in range(4):
    e(f"  s_add_u32 s{24+i}, s3, {i*4096}")
    e(f"  s_add_u32 s{46+i}, s44, {i*2048}")
e("  v_cmp_gt_u32 vcc, 53, v0")
for i in range(4):
    if i==3: e("  s_and_saveexec_b64 s[20:21], vcc")
    e(f"  buffer_load_dword v{10+i}, v1, s[12:15], s{24+i} offen")
    e(f"  buffer_load_dword v{14+i}, v1, s[8:11], s{24+i} offen")
    e(f"  buffer_load_ushort v{18+i}, v2, s[36:39], s{46+i} offen")
e("""  s_mov_b64 exec, s[20:21]
  v_mov_b32 v3, 1
  s_barrier""")
for i in range(4):
    if i==3: e("  s_and_saveexec_b64 s[20:21], vcc")
    e(f"""  s_waitcnt vmcnt({3*(3-i)+2})
  v_mul_u32_u24 v4, 83887, v{10+i}
  v_lshrrev_b32 v4, 24, v4
  v_lshlrev_b32 v{22+i}, 2, v4
  ds_add_rtn_u32 v{26+i}, v{22+i}, v3 offset:{CNT}
  v_mul_u32_u24 v4, 200, v4
  v_sub_u32 v{10+i}, v{10+i}, v4""")
e(f"""  s_mov_b64 exec, s[20:21]
  s_waitcnt lgkmcnt(0)
  s_barrier
  v_cmp_gt_u32 vcc, 64, v0
  s_and_saveexec_b64 s[20:21], vcc
  s_cbranch_execz L_k1_noscan
  v_lshlrev_b32 v4, 4, v0
  ds_read_b128 v[40:43], v4 offset:{CNT}
  v_mov_b32 v48, 0
  s_waitcnt lgkmcnt(0)""")
for j in range(4):
    e(f"  v_add_u32 v{49+j}, v{48+j}, v{40+j}")
e("  v_mov_b32 v58, v52")
dppscan(58)
e("  v_sub_u32 v58, v58, v52")
for j in range(4):
    e(f"  v_add_u32 v{48+j}, v{48+j}, v58")
e(f"""  ds_write_b128 v4, v[48:51] offset:{CNT}
  s_lshl_b32 s3, s2, 10
  buffer_store_dwordx4 v[48:51], v4, s[40:43], s3 offen
L_k1_noscan:
  s_mov_b64 exec, s[20:21]
  s_waitcnt lgkmcnt(0)
  s_barrier
  v_cmp_gt_u32 vcc, 53, v0""")
for i in range(4):
    if i==3: e("  s_and_saveexec_b64 s[20:21], vcc")
    e(f"  ds_read_b32 v{30+i}, v{22+i} offset:{CNT}")
e("  s_waitcnt vmcnt(0) lgkmcnt(0)")
for i in [3,0,1,2]:
    e(f"""  v_add_u32 v4, v{30+i}, v{26+i}
  v_lshlrev_b32 v4, 3, v4
  v_lshl_or_b32 v{35+2*i}, v{18+i}, 16, v{10+i}
  v_mov_b32 v{34+2*i}, v{14+i}
  ds_write_b64 v4, v[{34+2*i}:{35+2*i}] offset:{STAGE}""")
    if i==3: e("  s_mov_b64 exec, s[20:21]")
e(f"""  s_waitcnt lgkmcnt(0)
  s_barrier
  v_lshlrev_b32 v4, 4, v0
  s_mul_i32 s3, s2, {CHB}
  s_add_u32 s3, s3, {OFF_REC}
  s_add_u32 s24, s3, 16384
  ds_read_b128 v[40:43], v4 offset:{STAGE}
  v_cmp_gt_u32 vcc, 539, v0
  s_and_saveexec_b64 s[20:21], vcc
  ds_read_b128 v[44:47], v4 offset:{STAGE+16384}
  s_waitcnt lgkmcnt(0)
  buffer_store_dwordx4 v[44:47], v4, s[40:43], s24 offen
  s_mov_b64 exec, s[20:21]
  buffer_store_dwordx4 v[40:43], v4, s[40:43], s3 offen
  s_endpgm
L_k1_wt:
  s_waitcnt lgkmcnt(0)""")
srd(8,18,19,16384)
srd(12,22,23,OFF_WF+16384)
e("""  v_lshrrev_b32 v4, 8, v0      ; mt
  v_bfe_u32 v5, v0, 6, 2       ; ks
  v_and_b32 v6, 15, v0
  v_bfe_u32 v7, v0, 4, 2       ; l>>4
  v_lshrrev_b32 v8, 2, v6      ; m>>2
  v_and_b32 v6, 3, v6          ; m&3
  v_lshl_add_u32 v6, v4, 2, v6 ; + mt*4
  v_lshl_add_u32 v6, v8, 4, v6 ; + (m>>2)*16 -> n
  v_lshlrev_b32 v5, 5, v5
  v_lshl_add_u32 v5, v7, 3, v5 ; k
  v_lshlrev_b32 v5, 7, v5      ; k*128
  v_lshl_add_u32 v5, v6, 1, v5 ; + n*2""")
for j in range(8):
    e(f"  buffer_load_ushort v{10+j}, v5, s[8:11], 0 offen offset:{j*128}")
e("  s_waitcnt vmcnt(0)")
for j in range(4):
    e(f"  v_lshl_or_b32 v{20+j}, v{11+2*j}, 16, v{10+2*j}")
e(f"""  v_lshlrev_b32 v4, 4, v0
  s_mov_b32 s3, {OFF_WF}
  buffer_store_dwordx4 v[20:23], v4, s[12:15], s3 offen
L_k1_end:
  s_endpgm""")
NB=2
DREG=[32,48]; WREG=[64,68]; NREG=[91,92]; SLAST=[50,52]
RT=72; ACC=80; CUR=88; NODE=90; L16=93; L32=94; VNEXT=95; VONE=96; TA=97; TB=98; JUNK=99; XP=106; WP=116
head("k4_main_kernel")
e(f"""  s_cmp_ge_u32 s2, {B}
  s_cbranch_scc1 L_k4_end
  s_load_dwordx2 s[4:5], s[0:1], 0
  s_load_dwordx2 s[6:7], s[0:1], 40
  s_load_dwordx2 s[18:19], s[0:1], 56
  v_lshlrev_b32 v1, 4, v0
  v_lshrrev_b32 v4, 6, v0
  v_and_b32 v5, 63, v0
  s_mov_b32 s48, 0x01010101
  s_mov_b32 s49, 0x01010101
  v_readfirstlane_b32 s24, v4
  s_lshl_b32 s3, s2, 2
  v_lshlrev_b32 v6, 10, v0
  v_cmp_gt_u32 vcc, 256, v0
  s_waitcnt lgkmcnt(0)""")
srd(44,18,19,WS_END)
e(f"""  s_and_saveexec_b64 s[20:21], vcc
  buffer_load_dwordx2 v[100:101], v6, s[44:47], s3 offen
  s_mov_b64 exec, s[20:21]
  s_mov_b32 s3, {OFF_WF}
  buffer_load_dwordx4 v[{WP}:{WP+3}], v1, s[44:47], s3 offen""")
srd(8,4,5,6400000)
srd(12,6,7,6400000)
e(f"""  ; prefetch x rows for gemm
  v_and_b32 v9, 15, v5
  s_lshl_b32 s29, s24, 4
  v_add_u32 v9, s29, v9
  v_lshrrev_b32 v8, 4, v5           ; q
  s_mul_i32 s30, s2, {R*128}
  v_lshlrev_b32 v7, 7, v9
  v_lshl_add_u32 v7, v8, 4, v7
  v_cmp_gt_u32 vcc, {R}, v9
  s_and_saveexec_b64 s[20:21], vcc
  buffer_load_dwordx4 v[{XP}:{XP+3}], v7, s[8:11], s30 offen
  buffer_load_dwordx4 v[{XP+4}:{XP+7}], v7, s[8:11], s30 offen offset:64
  s_mov_b64 exec, s[20:21]
  v_mov_b32 v2, 0
  v_mov_b32 v3, 0
  v_mov_b32 v6, 0
  v_mov_b32 v7, 0
  v_mov_b32 v8, 0
  v_mov_b32 v9, 0""")
for i in range(3):
    e(f"  ds_write_b128 v1, v[6:9] offset:{i*16384}")
e(f"""  v_cmp_gt_u32 vcc, {(51456-49152)//16}, v0
  s_and_saveexec_b64 s[20:21], vcc
  ds_write_b128 v1, v[6:9] offset:49152
  s_mov_b64 exec, s[20:21]
  v_cmp_gt_u32 vcc, 4, v0
  s_and_saveexec_b64 s[20:21], vcc
  v_lshlrev_b32 v6, 3, v0
  v_mov_b32 v2, 0x01000000
  ds_write_b64 v6, v[2:3] offset:{DUMMY}
  s_mov_b64 exec, s[20:21]
  v_and_b32 v6, 7, v5
  v_lshlrev_b32 v{L32}, 5, v6
  v_lshlrev_b32 v{L16}, 4, v6
  v_mov_b32 v{VNEXT}, {NEXT}
  v_mov_b32 v{VONE}, 1
  v_add_u32 v{JUNK}, {JROW}, v{L32}
  v_cmp_gt_u32 vcc, 256, v0
  s_and_saveexec_b64 s[20:21], vcc
  s_cbranch_execz L_k4_nos1
  s_waitcnt vmcnt(3)
  v_sub_u32 v102, v101, v100         ; cnt
  v_mov_b32 v103, v102""")
dppscan(103)
e(f"""  v_lshlrev_b32 v6, 2, v4            ; wave*4
  v_add_u32 v6, {WT}, v6
  v_cmp_eq_u32 vcc, 63, v5
  s_and_saveexec_b64 s[54:55], vcc
  ds_write_b32 v6, v103
  s_mov_b64 exec, s[54:55]
L_k4_nos1:
  s_mov_b64 exec, s[20:21]
  s_waitcnt lgkmcnt(0)
  s_barrier
  v_mov_b32 v6, {WT}
  ds_read_b128 v[10:13], v6
  s_waitcnt lgkmcnt(0)
  v_readfirstlane_b32 s32, v10
  v_readfirstlane_b32 s33, v11
  v_readfirstlane_b32 s34, v12
  v_readfirstlane_b32 s35, v13
  s_add_u32 s33, s33, s32
  s_add_u32 s34, s34, s33
  s_add_u32 s23, s35, s34            ; n
  s_mov_b32 s25, 0
  s_cmp_eq_u32 s24, 1
  s_cselect_b32 s25, s32, s25
  s_cmp_eq_u32 s24, 2
  s_cselect_b32 s25, s33, s25
  s_cmp_eq_u32 s24, 3
  s_cselect_b32 s25, s34, s25
  v_cmp_gt_u32 vcc, 256, v0
  s_and_saveexec_b64 s[20:21], vcc
  v_sub_u32 v103, v103, v102
  v_add_u32 v103, s25, v103          ; P[g]
  v_sub_u32 v104, v100, v103         ; ls - P
  v_lshlrev_b32 v104, 3, v104
  v_mul_u32_u24 v105, {CHB}, v0
  v_add_u32 v104, v104, v105
  v_lshlrev_b32 v6, 2, v0
  v_add_u32 v6, {PA}, v6
  ds_write_b32 v6, v103
  ds_write_b32 v6, v104 offset:{BASEA-PA}
  s_mov_b64 exec, s[20:21]
  s_mov_b32 s27, 0
  s_mov_b32 s26, {OFF_REC}
  s_waitcnt lgkmcnt(0)
  s_barrier
L_k4_round:
  s_sub_u32 s28, s23, s27            ; remaining""")
for i in range(4):
    e(f"""  v_add_u32 v{22+i}, s27, v0
  v_add_u32 v{22+i}, {1024*i}, v{22+i}
  v_mov_b32 v{26+i}, {PA}""")
for step in [128,64,32,16,8,4,2,1]:
    for i in range(4):
        e(f"""  v_add_u32 v{30+i}, {4*step}, v{26+i}
  ds_read_b32 v{34+i}, v{30+i}""")
    for i in range(4):
        e(f"""  s_waitcnt lgkmcnt({3-i})
  v_cmp_le_u32 vcc, v{34+i}, v{22+i}
  v_cndmask_b32 v{26+i}, v{26+i}, v{30+i}, vcc""")
for i in range(4):
    e(f"  ds_read_b32 v{34+i}, v{26+i} offset:{BASEA-PA}")
for i in range(4):
    e(f"""  v_add_u32 v6, {1024*i}, v0
  v_cmp_gt_u32 vcc, s28, v6
  s_and_saveexec_b64 s[20:21], vcc
  s_waitcnt lgkmcnt({3-i})
  v_lshl_add_u32 v6, v{22+i}, 3, v{34+i}
  buffer_load_dwordx2 v[{10+2*i}:{11+2*i}], v6, s[44:47], s26 offen
  s_mov_b64 exec, s[20:21]""")
e(f"""  v_cmp_gt_u32 vcc, 256, v0
  s_and_saveexec_b64 s[20:21], vcc
  v_lshlrev_b32 v6, 2, v0
  v_mov_b32 v2, 0
  ds_write_b32 v6, v2 offset:{HIST}
  ds_write_b32 v{VNEXT}, v2
  s_mov_b64 exec, s[20:21]
  s_waitcnt lgkmcnt(0)
  s_barrier""")
for i in range(4):
    e(f"""  v_add_u32 v6, {1024*i}, v0
  v_cmp_gt_u32 vcc, s28, v6
  s_and_saveexec_b64 s[20:21], vcc
  s_waitcnt vmcnt({3-i})
  v_and_b32 v6, 0xff, v{11+2*i}
  v_lshlrev_b32 v6, 2, v6
  ds_add_rtn_u32 v{18+i}, v6, v{VONE} offset:{HIST}
  s_mov_b64 exec, s[20:21]""")
e(f"""  s_waitcnt lgkmcnt(0)
  s_barrier
  s_cmp_lg_u32 s24, 0
  s_cbranch_scc1 L_k4_noscan
  v_lshlrev_b32 v6, 4, v5
  ds_read_b128 v[22:25], v6 offset:{HIST}
  v_cmp_gt_u32 vcc, 50, v5
  s_waitcnt lgkmcnt(0)""")
for j in range(4):
    e(f"""  v_add_u32 v{26+j}, 3, v{22+j}
  v_and_b32 v{26+j}, -4, v{26+j}
  v_max_u32 v{26+j}, 4, v{26+j}
  v_cndmask_b32 v{26+j}, 0, v{26+j}, vcc
  v_lshlrev_b32 v{26+j}, 3, v{26+j}""")
e("""  v_add_u32 v30, v26, v27
  v_add_u32 v31, v28, v29
  v_add_u32 v30, v30, v31
  v_mov_b32 v31, v30""")
dppscan(31)
e(f"""  v_sub_u32 v31, v31, v30
  v_add_u32 v32, {SORTED}, v31       ; start0
  v_add_u32 v33, v32, v26            ; end0
  v_mov_b32 v34, v33
  v_add_u32 v35, v34, v27
  v_mov_b32 v36, v35
  v_add_u32 v37, v36, v28
  v_mov_b32 v38, v37
  v_add_u32 v39, v38, v29
  v_cmp_eq_u32 vcc, 50, v5
  v_mov_b32 v6, {DUMMY}
  v_mov_b32 v8, {DUMMY+32}
  v_cndmask_b32 v32, v32, v6, vcc
  v_cndmask_b32 v33, v33, v8, vcc
  v_lshlrev_b32 v6, 5, v5
  ds_write_b128 v6, v[32:35] offset:{ST}
  ds_write_b128 v6, v[36:39] offset:{ST+16}
  v_mov_b32 v2, 0x01000000
  v_mov_b32 v3, 0
  v_cmp_gt_u32 vcc, 50, v5
  s_and_b64 exec, exec, vcc""")
for h in range(4):
    for k in range(4):
        e(f"""  v_lshl_add_u32 v6, v{22+h}, 3, v{32+2*h}
  v_add_u32 v6, {8*k}, v6
  v_cmp_gt_u32 vcc, v{33+2*h}, v6
  s_and_saveexec_b64 s[20:21], vcc
  ds_write_b64 v6, v[2:3]
  s_mov_b64 exec, s[20:21]""")
e(f"""  s_mov_b64 exec, -1
L_k4_noscan:
  s_waitcnt lgkmcnt(0)
  s_barrier""")
for i in range(4):
    e(f"""  v_and_b32 v6, 0xff, v{11+2*i}
  v_lshlrev_b32 v6, 3, v6
  ds_read_b32 v{22+i}, v6 offset:{ST}""")
e("  s_waitcnt lgkmcnt(0)")
for i in range(4):
    e(f"""  v_add_u32 v6, {1024*i}, v0
  v_cmp_gt_u32 vcc, s28, v6
  s_and_saveexec_b64 s[20:21], vcc
  v_lshl_add_u32 v6, v{18+i}, 3, v{22+i}
  ds_write_b64 v6, v[{10+2*i}:{11+2*i}]
  s_mov_b64 exec, s[20:21]""")
e(f"""  v_add_u32 v6, {WL}, v1
  ds_write_b128 v6, v[{WP}:{WP+3}]
  s_waitcnt lgkmcnt(0)
  s_barrier
  v_mov_b32 v{CUR}, 0
  v_mov_b32 v{CUR+1}, 0""")
for r in range(8): e(f"  v_mov_b32 v{ACC+r}, 0")
lab=[0]
def issue(X):
    d = DREG[X]; w = WREG[X]; n = NREG[X]; sl = SLAST[X]
    lab[0]+=1
    e(f"""  v_cmp_eq_u32 vcc, v{CUR}, v{CUR+1}
  s_and_saveexec_b64 s[20:21], vcc
  s_cbranch_execz L_k4_ng{lab[0]}
  s_mov_b64 s[54:55], exec
  s_and_b64 exec, exec, s[48:49]
  ds_add_rtn_u32 v{TA}, v{VNEXT}, v{VONE}
  s_mov_b64 exec, s[54:55]
  s_waitcnt lgkmcnt(0)
  ds_swizzle_b32 v{TA}, v{TA} offset:0x18
  s_waitcnt lgkmcnt(0)
  v_min_u32 v{TA}, {R}, v{TA}
  v_lshlrev_b32 v{TB}, 3, v{TA}
  ds_read_b64 v[{CUR}:{CUR+1}], v{TB} offset:{ST}
  v_lshl_add_u32 v{NODE}, v{TA}, 8, v{L32}
  s_waitcnt lgkmcnt(0)
L_k4_ng{lab[0]}:
  s_mov_b64 exec, s[20:21]
  ds_read_b128 v[{RT}:{RT+3}], v{CUR}
  ds_read_b128 v[{RT+4}:{RT+7}], v{CUR} offset:16
  v_add_u32 v{CUR}, 32, v{CUR}
  v_mov_b32 v{n}, v{NODE}
  v_cmp_eq_u32 s[{sl}:{sl+1}], v{CUR}, v{CUR+1}
  s_waitcnt lgkmcnt(0)""")
    for k in range(4):
        e(f"""  v_lshl_add_u32 v{TA}, v{RT+2*k}, 7, v{L16}
  buffer_load_dwordx4 v[{d+4*k}:{d+4*k+3}], v{TA}, s[8:11], 0 offen
  v_mov_b32 v{w+k}, v{RT+1+2*k}""")
def consume(X):
    d = DREG[X]; w = WREG[X]; n = NREG[X]; sl = SLAST[X]
    lab[0]+=1
    for k in range(4):
        e(f"""  s_waitcnt vmcnt({4*(NB-1)+3-k})
  v_lshrrev_b32 v{TA}, 16, v{w+k}
  v_and_b32 v{TB}, 0xffff0000, v{w+k}""")
        for j in range(4):
            e(f"""  v_dot2c_f32_bf16 v{ACC+2*j}, v{d+4*k+j}, v{TA}
  v_dot2c_f32_bf16 v{ACC+1+2*j}, v{d+4*k+j}, v{TB}""")
    e(f"""  s_and_saveexec_b64 s[20:21], s[{sl}:{sl+1}]
  s_cbranch_execz L_k4_nf{lab[0]}
  ds_read_b128 v[{RT}:{RT+3}], v{n}
  ds_read_b128 v[{RT+4}:{RT+7}], v{n} offset:16
  s_waitcnt lgkmcnt(0)""")
    for r in range(8): e(f"  v_add_f32 v{RT+r}, v{RT+r}, v{ACC+r}")
    e(f"""  ds_write_b128 v{n}, v[{RT}:{RT+3}]
  ds_write_b128 v{n}, v[{RT+4}:{RT+7}] offset:16""")
    for r in range(8): e(f"  v_mov_b32 v{ACC+r}, 0")
    e(f"""L_k4_nf{lab[0]}:
  s_mov_b64 exec, s[20:21]""")
for X in range(NB-1): issue(X)
e("L_k4_loop:")
for X in range(NB):
    issue((X+NB-1)%NB); consume(X)
    e(f"  v_cmp_ne_u32 vcc, v{JUNK}, v{NREG[(X+1)%NB]}")
    if X<NB-1: e("  s_cbranch_vccz L_k4_gdone")
    else: e("  s_cbranch_vccnz L_k4_loop")
e(f"""L_k4_gdone:
  s_waitcnt lgkmcnt(0)
  s_barrier
  s_add_u32 s27, s27, {CAP}
  s_cmp_lt_u32 s27, s23
  s_cbranch_scc1 L_k4_round
  s_cmp_ge_u32 s24, 13
  s_cbranch_scc1 L_k4_end
  v_lshlrev_b32 v8, 4, v5
  v_add_u32 v8, {WL}, v8
  v_and_b32 v9, 15, v5
  s_lshl_b32 s29, s24, 4
  v_add_u32 v9, s29, v9
  v_lshrrev_b32 v10, 4, v5          ; q
  v_lshlrev_b32 v11, 7, v9
  s_waitcnt vmcnt(0)""")
for r in range(8): e(f"  v_mov_b32 v{16+r}, v{XP+r}")
for f in range(16):
    e(f"  ds_read_b128 v[{64+4*f}:{67+4*f}], v8 offset:{f*1024}")
e("""  v_lshlrev_b32 v13, 8, v9
  v_lshl_add_u32 v13, v10, 5, v13
  ds_read_b128 v[24:27], v13
  ds_read_b128 v[28:31], v13 offset:16
  ds_read_b128 v[32:35], v13 offset:128
  ds_read_b128 v[36:39], v13 offset:144
  s_waitcnt lgkmcnt(0)""")
for h in range(2):
    for j in range(4):
        e(f"  v_cvt_pk_bf16_f32 v{40+4*h+j}, v{24+8*h+2*j}, v{25+8*h+2*j}")
for mt in range(4):
    for r in range(4): e(f"  v_mov_b32 v{48+4*mt+r}, 0")
e("  s_nop 1")
bsrc=[16,20,40,44]
for ks in range(4):
    for mt in range(4):
        f=mt*4+ks
        e(f"  v_mfma_f32_16x16x32_bf16 v[{48+4*mt}:{51+4*mt}], v[{64+4*f}:{67+4*f}], v[{bsrc[ks]}:{bsrc[ks]+3}], v[{48+4*mt}:{51+4*mt}]")
e(f"""  s_nop 7
  s_nop 7
  v_lshl_add_u32 v12, v10, 5, v11
  v_cmp_gt_u32 vcc, {R}, v9
  s_and_saveexec_b64 s[20:21], vcc""")
for mt in range(4):
    e(f"""  v_cvt_pk_bf16_f32 v{24+2*mt}, v{48+4*mt}, v{49+4*mt}
  v_cvt_pk_bf16_f32 v{25+2*mt}, v{50+4*mt}, v{51+4*mt}""")
e("""  buffer_store_dwordx4 v[24:27], v12, s[12:15], s30 offen
  buffer_store_dwordx4 v[28:31], v12, s[12:15], s30 offen offset:16""")
e("""L_k4_end:
  s_endpgm""")
e('.section .rodata,"a"')
for name,nv in (("k1_sort_kernel",64),("k4_main_kernel",128)):
    e(f""".p2align 6
.amdhsa_kernel {name}
  .amdhsa_next_free_vgpr {nv}
  .amdhsa_next_free_sgpr 80
  .amdhsa_accum_offset {nv}
  .amdhsa_group_segment_fixed_size 0
  .amdhsa_kernarg_size 64
  .amdhsa_user_sgpr_count 2
  .amdhsa_user_sgpr_kernarg_segment_ptr 1
  .amdhsa_system_sgpr_workgroup_id_x 1
.end_amdhsa_kernel""")
open(OUT,'w').write("\n".join(o)+"\n")
```

```python
import sys
src, dst = sys.argv[1], sys.argv[2]
wgs = [int(x) for x in sys.argv[3:7]]
s=open(src).read()
k=s.index("k4_main_kernel:\n")
h,t=s[:k],s[k:]
def stamp(i):
    return f"  s_memrealtime s[62:63]\n  s_waitcnt lgkmcnt(0)\n  s_mov_b32 s{64+i}, s62\n"
def rep(a,b):
    global t
    assert a in t, a
    t=t.replace(a,b,1)
rep("  s_cbranch_scc1 L_k4_end\n  s_load_dwordx2 s[4:5], s[0:1], 0\n","  s_cbranch_scc1 L_k4_end\n"+stamp(0)+"  s_load_dwordx2 s[74:75], s[0:1], 48\n  s_load_dwordx2 s[4:5], s[0:1], 0\n")
rep("  v_sub_u32 v102, v101, v100         ; cnt\n",stamp(1)+"  v_sub_u32 v102, v101, v100         ; cnt\n")
rep("L_k4_round:\n","L_k4_round:\n"+stamp(2))
rep("  s_cmp_lg_u32 s24, 0\n  s_cbranch_scc1 L_k4_noscan\n",stamp(3)+"  s_cmp_lg_u32 s24, 0\n  s_cbranch_scc1 L_k4_noscan\n")
rep("  v_mov_b32 v88, 0\n",stamp(4)+"  v_mov_b32 v88, 0\n")
rep("  s_add_u32 s27, s27, ",stamp(5)+"  s_add_u32 s27, s27, ")
end="""  buffer_store_dwordx4 v[28:31], v12, s[12:15], s30 offen offset:16
"""
dump="""  s_mov_b64 exec, -1
  s_waitcnt vmcnt(0)
"""+stamp(6)+f"""  s_cmp_lg_u32 s24, 0
  s_cbranch_scc1 L_k4_end
  s_mov_b32 s76, -1
  s_cmp_eq_u32 s2, {wgs[0]}
  s_cselect_b32 s76, 0, s76
  s_cmp_eq_u32 s2, {wgs[1]}
  s_cselect_b32 s76, 32, s76
  s_cmp_eq_u32 s2, {wgs[2]}
  s_cselect_b32 s76, 64, s76
  s_cmp_eq_u32 s2, {wgs[3]}
  s_cselect_b32 s76, 96, s76
  s_cmp_eq_u32 s76, -1
  s_cbranch_scc1 L_k4_end
  v_mov_b32 v0, 0
"""
for i in range(7):
    dump+=f"  v_mov_b32 v{2+i}, s{64+i}\n"
dump+="""  v_mov_b32 v9, 0
  s_mov_b32 s80, s74
  s_mov_b32 s81, s75
  s_mov_b32 s82, 256
  s_mov_b32 s83, 0x00020000
  s_mov_b64 exec, 1
  buffer_store_dwordx4 v[2:5], v0, s[80:83], s76 offen
  buffer_store_dwordx4 v[6:9], v0, s[80:83], s76 offen offset:16
"""
rep(end,end+dump)
s=h+t
s=s.replace(".amdhsa_next_free_sgpr 80",".amdhsa_next_free_sgpr 96")
open(dst,'w').write(s)
```

```python
import sys
HDR = open('standalone__spectral_conv_chebnet__graph.s.ref').read().split('; Override launch')[0]
OUT = sys.argv[1] if len(sys.argv) > 1 else 'standalone__spectral_conv_chebnet__graph.s'
G=256; CH=3125; R=200; B=250; CHB=25088
OFF_C=0; OFF_WF=0x80000; OFF_REC=0x100000
WS_END=OFF_REC+G*CHB
o=[]
def e(s): o.append(s)
T1=0; HIST=51456; ST=52480; NEXT=54528; MAXC=54532; DUMMY=54560; SORTED=54592; SCAP=8992
WL=SORTED+SCAP*8; LDS4=WL+16384
assert LDS4<=163840 and WL%16==0
JROW=R*256
CNT=0; STAGE=1024; LDS1=1024+25088
e(HDR.rstrip())
e(f"; @launch kernel=k1_sort_kernel grid=(257,1,1) block=(1024,1,1) lds={LDS1}")
e(f"; @launch kernel=k4_main_kernel grid=(250,1,1) block=(1024,1,1) lds={LDS4}")
e('.amdgcn_target "amdgcn-amd-amdhsa--gfx950"')
e('.text')
def srd(d, lo, hi, size):
    e(f"  s_mov_b32 s{d}, s{lo}\n  s_mov_b32 s{d+1}, s{hi}\n  s_mov_b32 s{d+2}, {size}\n  s_mov_b32 s{d+3}, 0x00020000")
def head(name):
    e(f".globl {name}\n.p2align 8\n.type {name},@function\n{name}:")
DPPS=["row_shr:1 row_mask:0xf bank_mask:0xf bound_ctrl:0","row_shr:2 row_mask:0xf bank_mask:0xf bound_ctrl:0","row_shr:4 row_mask:0xf bank_mask:0xf bound_ctrl:0","row_shr:8 row_mask:0xf bank_mask:0xf bound_ctrl:0","row_bcast:15 row_mask:0xa bank_mask:0xf","row_bcast:31 row_mask:0xc bank_mask:0xf"]
def dppscan(v):
    for ctl in DPPS:
        e(f"  s_nop 1\n  v_add_u32_dpp v{v}, v{v}, v{v} {ctl}")
    e("  s_nop 1")
head("k1_sort_kernel")
e("""  s_cmp_gt_u32 s2, 256
  s_cbranch_scc1 L_k1_end
  s_load_dwordx4 s[4:7], s[0:1], 8
  s_load_dwordx4 s[16:19], s[0:1], 24   ; ew, w
  s_load_dwordx2 s[22:23], s[0:1], 56   ; ws
  s_cmp_eq_u32 s2, 256
  s_cbranch_scc1 L_k1_wt
  v_lshlrev_b32 v1, 2, v0
  v_lshlrev_b32 v2, 1, v0
  v_mov_b32 v4, 0
  v_cmp_gt_u32 vcc, 256, v0
  s_and_saveexec_b64 s[20:21], vcc
  ds_write_b32 v1, v4
  s_mov_b64 exec, s[20:21]
  s_waitcnt lgkmcnt(0)""")
srd(8,4,5,3200000)
srd(12,6,7,3200000)
srd(36,16,17,1600000)
srd(40,22,23,WS_END)
e("  s_mul_i32 s3, s2, 12500\n  s_mul_i32 s44, s2, 6250")
for i in range(4):
    e(f"  s_add_u32 s{24+i}, s3, {i*4096}")
    e(f"  s_add_u32 s{46+i}, s44, {i*2048}")
e("  v_cmp_gt_u32 vcc, 53, v0")
for i in range(4):
    if i==3: e("  s_and_saveexec_b64 s[20:21], vcc")
    e(f"  buffer_load_dword v{10+i}, v1, s[12:15], s{24+i} offen")
    e(f"  buffer_load_dword v{14+i}, v1, s[8:11], s{24+i} offen")
    e(f"  buffer_load_ushort v{18+i}, v2, s[36:39], s{46+i} offen")
e("""  s_mov_b64 exec, s[20:21]
  v_mov_b32 v3, 1
  s_barrier""")
for i in range(4):
    if i==3: e("  s_and_saveexec_b64 s[20:21], vcc")
    e(f"""  s_waitcnt vmcnt({3*(3-i)+2})
  v_mul_u32_u24 v4, 83887, v{10+i}
  v_lshrrev_b32 v4, 24, v4
  v_lshlrev_b32 v{22+i}, 2, v4
  ds_add_rtn_u32 v{26+i}, v{22+i}, v3 offset:{CNT}
  v_mul_u32_u24 v4, 200, v4
  v_sub_u32 v{10+i}, v{10+i}, v4""")
e(f"""  s_mov_b64 exec, s[20:21]
  s_waitcnt lgkmcnt(0)
  s_barrier
  v_cmp_gt_u32 vcc, 64, v0
  s_and_saveexec_b64 s[20:21], vcc
  s_cbranch_execz L_k1_noscan
  v_lshlrev_b32 v4, 4, v0
  ds_read_b128 v[40:43], v4 offset:{CNT}
  v_mov_b32 v48, 0
  s_waitcnt lgkmcnt(0)""")
for j in range(4):
    e(f"  v_add_u32 v{49+j}, v{48+j}, v{40+j}")
e("  v_mov_b32 v58, v52")
dppscan(58)
e("  v_sub_u32 v58, v58, v52")
for j in range(4):
    e(f"  v_add_u32 v{48+j}, v{48+j}, v58")
e(f"""  ds_write_b128 v4, v[48:51] offset:{CNT}
  s_lshl_b32 s3, s2, 10
  buffer_store_dwordx4 v[48:51], v4, s[40:43], s3 offen
L_k1_noscan:
  s_mov_b64 exec, s[20:21]
  s_waitcnt lgkmcnt(0)
  s_barrier
  v_cmp_gt_u32 vcc, 53, v0""")
for i in range(4):
    if i==3: e("  s_and_saveexec_b64 s[20:21], vcc")
    e(f"  ds_read_b32 v{30+i}, v{22+i} offset:{CNT}")
e("  s_waitcnt vmcnt(0) lgkmcnt(0)")
for i in [3,0,1,2]:
    e(f"""  v_add_u32 v4, v{30+i}, v{26+i}
  v_lshlrev_b32 v4, 3, v4
  v_lshl_or_b32 v{35+2*i}, v{18+i}, 16, v{10+i}
  v_mov_b32 v{34+2*i}, v{14+i}
  ds_write_b64 v4, v[{34+2*i}:{35+2*i}] offset:{STAGE}""")
    if i==3: e("  s_mov_b64 exec, s[20:21]")
e(f"""  s_waitcnt lgkmcnt(0)
  s_barrier
  v_lshlrev_b32 v4, 4, v0
  s_mul_i32 s3, s2, {CHB}
  s_add_u32 s3, s3, {OFF_REC}
  s_add_u32 s24, s3, 16384
  ds_read_b128 v[40:43], v4 offset:{STAGE}
  v_cmp_gt_u32 vcc, 539, v0
  s_and_saveexec_b64 s[20:21], vcc
  ds_read_b128 v[44:47], v4 offset:{STAGE+16384}
  s_waitcnt lgkmcnt(0)
  buffer_store_dwordx4 v[44:47], v4, s[40:43], s24 offen
  s_mov_b64 exec, s[20:21]
  buffer_store_dwordx4 v[40:43], v4, s[40:43], s3 offen
  s_endpgm
L_k1_wt:
  s_waitcnt lgkmcnt(0)""")
srd(8,18,19,16384)
srd(12,22,23,OFF_WF+16384)
e("""  v_lshrrev_b32 v4, 8, v0      ; mt
  v_bfe_u32 v5, v0, 6, 2       ; ks
  v_and_b32 v6, 15, v0
  v_bfe_u32 v7, v0, 4, 2       ; l>>4
  v_lshrrev_b32 v8, 2, v6      ; m>>2
  v_and_b32 v6, 3, v6          ; m&3
  v_lshl_add_u32 v6, v4, 2, v6 ; + mt*4
  v_lshl_add_u32 v6, v8, 4, v6 ; + (m>>2)*16 -> n
  v_lshlrev_b32 v5, 5, v5
  v_lshl_add_u32 v5, v7, 3, v5 ; k
  v_lshlrev_b32 v5, 7, v5      ; k*128
  v_lshl_add_u32 v5, v6, 1, v5 ; + n*2""")
for j in range(8):
    e(f"  buffer_load_ushort v{10+j}, v5, s[8:11], 0 offen offset:{j*128}")
e("  s_waitcnt vmcnt(0)")
for j in range(4):
    e(f"  v_lshl_or_b32 v{20+j}, v{11+2*j}, 16, v{10+2*j}")
e(f"""  v_lshlrev_b32 v4, 4, v0
  s_mov_b32 s3, {OFF_WF}
  buffer_store_dwordx4 v[20:23], v4, s[12:15], s3 offen
L_k1_end:
  s_endpgm""")
NB=2
DREG=[32,48]; WREG=[64,68]; NREG=[91,92]; SLAST=[50,52]
RT=72; ACC=80; CUR=88; NODE=90; L16=93; L32=94; VNEXT=95; VONE=96; TA=97; TB=98; JUNK=99; XP=106; WP=116
head("k4_main_kernel")
e(f"""  s_cmp_ge_u32 s2, {B}
  s_cbranch_scc1 L_k4_end
  s_load_dwordx2 s[4:5], s[0:1], 0
  s_load_dwordx2 s[6:7], s[0:1], 40
  s_load_dwordx2 s[18:19], s[0:1], 56
  v_lshlrev_b32 v1, 4, v0
  v_lshrrev_b32 v4, 6, v0
  v_and_b32 v5, 63, v0
  s_mov_b32 s48, 0x01010101
  s_mov_b32 s49, 0x01010101
  v_readfirstlane_b32 s24, v4
  s_lshl_b32 s3, s2, 2
  v_lshrrev_b32 v105, 2, v0          ; chunk g
  v_lshlrev_b32 v6, 10, v105
  s_waitcnt lgkmcnt(0)""")
srd(44,18,19,WS_END)
e(f"""  buffer_load_dwordx2 v[100:101], v6, s[44:47], s3 offen
  s_mov_b32 s3, {OFF_WF}
  buffer_load_dwordx4 v[{WP}:{WP+3}], v1, s[44:47], s3 offen""")
srd(8,4,5,6400000)
srd(12,6,7,6400000)
e(f"""  ; prefetch x rows for gemm
  v_and_b32 v9, 15, v5
  s_lshl_b32 s29, s24, 4
  v_add_u32 v9, s29, v9
  v_lshrrev_b32 v8, 4, v5           ; q
  s_mul_i32 s30, s2, {R*128}
  v_lshlrev_b32 v7, 7, v9
  v_lshl_add_u32 v7, v8, 4, v7
  v_cmp_gt_u32 vcc, {R}, v9
  s_and_saveexec_b64 s[20:21], vcc
  buffer_load_dwordx4 v[{XP}:{XP+3}], v7, s[8:11], s30 offen
  buffer_load_dwordx4 v[{XP+4}:{XP+7}], v7, s[8:11], s30 offen offset:64
  s_mov_b64 exec, s[20:21]
  v_mov_b32 v2, 0
  v_mov_b32 v3, 0
  v_mov_b32 v6, 0
  v_mov_b32 v7, 0
  v_mov_b32 v8, 0
  v_mov_b32 v9, 0""")
for i in range(3):
    e(f"  ds_write_b128 v1, v[6:9] offset:{i*16384}")
e(f"""  v_cmp_gt_u32 vcc, {(51456-49152)//16}, v0
  s_and_saveexec_b64 s[20:21], vcc
  ds_write_b128 v1, v[6:9] offset:49152
  s_mov_b64 exec, s[20:21]
  v_cmp_gt_u32 vcc, 4, v0
  s_and_saveexec_b64 s[20:21], vcc
  v_lshlrev_b32 v6, 3, v0
  v_mov_b32 v2, 0x01000000
  ds_write_b64 v6, v[2:3] offset:{DUMMY}
  v_mov_b32 v6, {MAXC}
  ds_write_b32 v6, v3
  s_mov_b64 exec, s[20:21]
  v_and_b32 v6, 7, v5
  v_lshlrev_b32 v{L32}, 5, v6
  v_lshlrev_b32 v{L16}, 4, v6
  v_mov_b32 v{VNEXT}, {NEXT}
  v_mov_b32 v{VONE}, 1
  v_add_u32 v{JUNK}, {JROW}, v{L32}
  v_and_b32 v103, 3, v0
  v_lshlrev_b32 v103, 1, v103        ; 2j
  v_mul_u32_u24 v104, {CHB}, v105
  v_lshl_add_u32 v104, v103, 3, v104 ; g*CHB + 16j
  s_mov_b32 s27, 0
  s_mov_b32 s26, {OFF_REC}
  s_waitcnt vmcnt(3)
  v_sub_u32 v102, v101, v100         ; cnt
  v_lshl_add_u32 v104, v100, 3, v104 ; + ls*8
L_k4_round:
  v_add_u32 v101, s27, v103""")
for i in range(4):
    e(f"""  v_add_u32 v6, {8*i}, v101
  v_cmp_gt_u32 vcc, v102, v6
  s_and_saveexec_b64 s[20:21], vcc
  buffer_load_dwordx4 v[{10+4*i}:{13+4*i}], v104, s[44:47], s26 offen offset:{64*i}
  s_mov_b64 exec, s[20:21]""")
NPF=(SCAP*8)//16
e(f"""  v_mov_b32 v6, 0x01000000
  v_mov_b32 v7, 0
  v_mov_b32 v8, 0x01000000
  v_mov_b32 v9, 0
  v_add_u32 v2, {SORTED}, v1""")
for i in range(NPF//1024):
    e(f"  ds_write_b128 v2, v[6:9] offset:{i*16384}")
e(f"""  v_cmp_gt_u32 vcc, {NPF%1024}, v0
  s_and_saveexec_b64 s[20:21], vcc
  v_add_u32 v2, {(NPF//1024)*16384}, v2
  ds_write_b128 v2, v[6:9]
  s_mov_b64 exec, s[20:21]
  v_cmp_gt_u32 vcc, 256, v0
  s_and_saveexec_b64 s[20:21], vcc
  v_lshlrev_b32 v6, 2, v0
  ds_write_b32 v6, v7 offset:{HIST}
  ds_write_b32 v{VNEXT}, v7
  s_mov_b64 exec, s[20:21]
  s_waitcnt lgkmcnt(0)
  s_barrier
  v_cmp_lt_u32 vcc, 32, v102
  s_and_saveexec_b64 s[20:21], vcc
  v_mov_b32 v6, {MAXC}
  ds_max_u32 v6, v102
  s_mov_b64 exec, s[20:21]""")
for i in range(4):
    for h in range(2):
        e(f"""  v_add_u32 v6, {8*i+h}, v101
  v_cmp_gt_u32 vcc, v102, v6
  s_and_saveexec_b64 s[20:21], vcc""")
        if h==0: e(f"  s_waitcnt vmcnt({3-i})")
        e(f"""  v_and_b32 v6, 0xff, v{11+4*i+2*h}
  v_lshlrev_b32 v6, 2, v6
  ds_add_rtn_u32 v{26+2*i+h}, v6, v{VONE} offset:{HIST}
  s_mov_b64 exec, s[20:21]""")
e(f"""  s_waitcnt lgkmcnt(0)
  s_barrier
  s_cmp_lg_u32 s24, 0
  s_cbranch_scc1 L_k4_noscan
  v_lshlrev_b32 v6, 4, v5
  ds_read_b128 v[42:45], v6 offset:{HIST}
  v_cmp_gt_u32 vcc, 50, v5
  s_waitcnt lgkmcnt(0)""")
for j in range(4):
    e(f"""  v_add_u32 v{46+j}, 3, v{42+j}
  v_and_b32 v{46+j}, -4, v{46+j}
  v_max_u32 v{46+j}, 4, v{46+j}
  v_cndmask_b32 v{46+j}, 0, v{46+j}, vcc
  v_lshlrev_b32 v{46+j}, 3, v{46+j}""")
e("""  v_add_u32 v50, v46, v47
  v_add_u32 v51, v48, v49
  v_add_u32 v50, v50, v51
  v_mov_b32 v51, v50""")
dppscan(51)
e(f"""  v_sub_u32 v51, v51, v50
  v_add_u32 v52, {SORTED}, v51       ; start0
  v_add_u32 v53, v52, v46            ; end0
  v_mov_b32 v54, v53
  v_add_u32 v55, v54, v47
  v_mov_b32 v56, v55
  v_add_u32 v57, v56, v48
  v_mov_b32 v58, v57
  v_add_u32 v59, v58, v49
  v_cmp_eq_u32 vcc, 50, v5
  v_mov_b32 v6, {DUMMY}
  v_mov_b32 v8, {DUMMY+32}
  v_cndmask_b32 v52, v52, v6, vcc
  v_cndmask_b32 v53, v53, v8, vcc
  v_lshlrev_b32 v6, 5, v5
  ds_write_b128 v6, v[52:55] offset:{ST}
  ds_write_b128 v6, v[56:59] offset:{ST+16}
L_k4_noscan:
  s_waitcnt lgkmcnt(0)
  s_barrier""")
for i in range(4):
    for h in range(2):
        e(f"""  v_and_b32 v6, 0xff, v{11+4*i+2*h}
  v_lshlrev_b32 v6, 3, v6
  ds_read_b32 v{34+2*i+h}, v6 offset:{ST}""")
e(f"""  v_mov_b32 v6, {MAXC}
  ds_read_b32 v100, v6
  v_add_u32 v6, {WL}, v1
  ds_write_b128 v6, v[{WP}:{WP+3}]""")
for i in range(4):
    for h in range(2):
        e(f"""  v_add_u32 v6, {8*i+h}, v101
  v_cmp_gt_u32 vcc, v102, v6
  s_and_saveexec_b64 s[20:21], vcc
  s_waitcnt lgkmcnt({9-2*i-h})
  v_lshl_add_u32 v6, v{26+2*i+h}, 3, v{34+2*i+h}
  ds_write_b64 v6, v[{10+4*i+2*h}:{11+4*i+2*h}]
  s_mov_b64 exec, s[20:21]""")
e(f"""  s_waitcnt lgkmcnt(0)
  s_barrier
  v_mov_b32 v{CUR}, 0
  v_mov_b32 v{CUR+1}, 0""")
for r in range(8): e(f"  v_mov_b32 v{ACC+r}, 0")
lab=[0]
def issue(X):
    d = DREG[X]; w = WREG[X]; n = NREG[X]; sl = SLAST[X]
    lab[0]+=1
    e(f"""  v_cmp_eq_u32 vcc, v{CUR}, v{CUR+1}
  s_and_saveexec_b64 s[20:21], vcc
  s_cbranch_execz L_k4_ng{lab[0]}
  s_mov_b64 s[54:55], exec
  s_and_b64 exec, exec, s[48:49]
  ds_add_rtn_u32 v{TA}, v{VNEXT}, v{VONE}
  s_mov_b64 exec, s[54:55]
  s_waitcnt lgkmcnt(0)
  ds_swizzle_b32 v{TA}, v{TA} offset:0x18
  s_waitcnt lgkmcnt(0)
  v_min_u32 v{TA}, {R}, v{TA}
  v_lshlrev_b32 v{TB}, 3, v{TA}
  ds_read_b64 v[{CUR}:{CUR+1}], v{TB} offset:{ST}
  v_lshl_add_u32 v{NODE}, v{TA}, 8, v{L32}
  s_waitcnt lgkmcnt(0)
L_k4_ng{lab[0]}:
  s_mov_b64 exec, s[20:21]
  ds_read_b128 v[{RT}:{RT+3}], v{CUR}
  ds_read_b128 v[{RT+4}:{RT+7}], v{CUR} offset:16
  v_add_u32 v{CUR}, 32, v{CUR}
  v_mov_b32 v{n}, v{NODE}
  v_cmp_eq_u32 s[{sl}:{sl+1}], v{CUR}, v{CUR+1}
  s_waitcnt lgkmcnt(0)""")
    for k in range(4):
        e(f"""  v_lshl_add_u32 v{TA}, v{RT+2*k}, 7, v{L16}
  buffer_load_dwordx4 v[{d+4*k}:{d+4*k+3}], v{TA}, s[8:11], 0 offen
  v_mov_b32 v{w+k}, v{RT+1+2*k}""")
def consume(X):
    d = DREG[X]; w = WREG[X]; n = NREG[X]; sl = SLAST[X]
    lab[0]+=1
    for k in range(4):
        e(f"""  s_waitcnt vmcnt({4*(NB-1)+3-k})
  v_lshrrev_b32 v{TA}, 16, v{w+k}
  v_and_b32 v{TB}, 0xffff0000, v{w+k}""")
        for j in range(4):
            e(f"""  v_dot2c_f32_bf16 v{ACC+2*j}, v{d+4*k+j}, v{TA}
  v_dot2c_f32_bf16 v{ACC+1+2*j}, v{d+4*k+j}, v{TB}""")
    e(f"""  s_and_saveexec_b64 s[20:21], s[{sl}:{sl+1}]
  s_cbranch_execz L_k4_nf{lab[0]}
  ds_read_b128 v[{RT}:{RT+3}], v{n}
  ds_read_b128 v[{RT+4}:{RT+7}], v{n} offset:16
  s_waitcnt lgkmcnt(0)""")
    for r in range(8): e(f"  v_add_f32 v{RT+r}, v{RT+r}, v{ACC+r}")
    e(f"""  ds_write_b128 v{n}, v[{RT}:{RT+3}]
  ds_write_b128 v{n}, v[{RT+4}:{RT+7}] offset:16""")
    for r in range(8): e(f"  v_mov_b32 v{ACC+r}, 0")
    e(f"""L_k4_nf{lab[0]}:
  s_mov_b64 exec, s[20:21]""")
for X in range(NB-1): issue(X)
e("L_k4_loop:")
for X in range(NB):
    issue((X+NB-1)%NB); consume(X)
    e(f"  v_cmp_ne_u32 vcc, v{JUNK}, v{NREG[(X+1)%NB]}")
    if X<NB-1: e("  s_cbranch_vccz L_k4_gdone")
    else: e("  s_cbranch_vccnz L_k4_loop")
e(f"""L_k4_gdone:
  s_waitcnt lgkmcnt(0)
  s_barrier
  v_readfirstlane_b32 s23, v100
  s_add_u32 s27, s27, 32
  s_add_u32 s26, s26, 256
  s_cmp_lt_u32 s27, s23
  s_cbranch_scc1 L_k4_round
  s_cmp_ge_u32 s24, 13
  s_cbranch_scc1 L_k4_end
  v_lshlrev_b32 v8, 4, v5
  v_add_u32 v8, {WL}, v8
  v_and_b32 v9, 15, v5
  s_lshl_b32 s29, s24, 4
  v_add_u32 v9, s29, v9
  v_lshrrev_b32 v10, 4, v5          ; q
  v_lshlrev_b32 v11, 7, v9
  s_waitcnt vmcnt(0)""")
for r in range(8): e(f"  v_mov_b32 v{16+r}, v{XP+r}")
for f in range(16):
    e(f"  ds_read_b128 v[{64+4*f}:{67+4*f}], v8 offset:{f*1024}")
e("""  v_lshlrev_b32 v13, 8, v9
  v_lshl_add_u32 v13, v10, 5, v13
  ds_read_b128 v[24:27], v13
  ds_read_b128 v[28:31], v13 offset:16
  ds_read_b128 v[32:35], v13 offset:128
  ds_read_b128 v[36:39], v13 offset:144
  s_waitcnt lgkmcnt(0)""")
for h in range(2):
    for j in range(4):
        e(f"  v_cvt_pk_bf16_f32 v{40+4*h+j}, v{24+8*h+2*j}, v{25+8*h+2*j}")
for mt in range(4):
    for r in range(4): e(f"  v_mov_b32 v{48+4*mt+r}, 0")
e("  s_nop 1")
bsrc=[16,20,40,44]
for ks in range(4):
    for mt in range(4):
        f=mt*4+ks
        e(f"  v_mfma_f32_16x16x32_bf16 v[{48+4*mt}:{51+4*mt}], v[{64+4*f}:{67+4*f}], v[{bsrc[ks]}:{bsrc[ks]+3}], v[{48+4*mt}:{51+4*mt}]")
e(f"""  s_nop 7
  s_nop 7
  v_lshl_add_u32 v12, v10, 5, v11
  v_cmp_gt_u32 vcc, {R}, v9
  s_and_saveexec_b64 s[20:21], vcc""")
for mt in range(4):
    e(f"""  v_cvt_pk_bf16_f32 v{24+2*mt}, v{48+4*mt}, v{49+4*mt}
  v_cvt_pk_bf16_f32 v{25+2*mt}, v{50+4*mt}, v{51+4*mt}""")
e("""  buffer_store_dwordx4 v[24:27], v12, s[12:15], s30 offen
  buffer_store_dwordx4 v[28:31], v12, s[12:15], s30 offen offset:16""")
e("""L_k4_end:
  s_endpgm""")
e('.section .rodata,"a"')
for name,nv in (("k1_sort_kernel",64),("k4_main_kernel",128)):
    e(f""".p2align 6
.amdhsa_kernel {name}
  .amdhsa_next_free_vgpr {nv}
  .amdhsa_next_free_sgpr 80
  .amdhsa_accum_offset {nv}
  .amdhsa_group_segment_fixed_size 0
  .amdhsa_kernarg_size 64
  .amdhsa_user_sgpr_count 2
  .amdhsa_user_sgpr_kernarg_segment_ptr 1
  .amdhsa_system_sgpr_workgroup_id_x 1
.end_amdhsa_kernel""")
open(OUT,'w').write("\n".join(o)+"\n")
```

```python
import sys
HDR = open('standalone__spectral_conv_chebnet__graph.s.ref').read().split('; Override launch')[0]
OUT = sys.argv[1] if len(sys.argv) > 1 else 'standalone__spectral_conv_chebnet__graph.s'
G=256; CH=3125; R=200; B=250; CHB=25088
OFF_C=0; OFF_WF=0x80000; OFF_REC=0x100000
WS_END=OFF_REC+G*CHB
o=[]
def e(s): o.append(s)
T1=0; HIST=51456; ST=52480; NEXT=54528; MAXC=54532; DUMMY=54560; SORTED=54592; SCAP=8992
WL=SORTED+SCAP*8; LDS4=WL+16384
assert LDS4<=163840 and WL%16==0
JROW=R*256
CNT=0; STAGE=1024; LDS1=1024+25088
e(HDR.rstrip())
e(f"; @launch kernel=k1_sort_kernel grid=(257,1,1) block=(1024,1,1) lds={LDS1}")
e(f"; @launch kernel=k4_main_kernel grid=(250,1,1) block=(1024,1,1) lds={LDS4}")
e('.amdgcn_target "amdgcn-amd-amdhsa--gfx950"')
e('.text')
def srd(d, lo, hi, size):
    e(f"  s_mov_b32 s{d}, s{lo}\n  s_mov_b32 s{d+1}, s{hi}\n  s_mov_b32 s{d+2}, {size}\n  s_mov_b32 s{d+3}, 0x00020000")
def head(name):
    e(f".globl {name}\n.p2align 8\n.type {name},@function\n{name}:")
DPPS=["row_shr:1 row_mask:0xf bank_mask:0xf bound_ctrl:0","row_shr:2 row_mask:0xf bank_mask:0xf bound_ctrl:0","row_shr:4 row_mask:0xf bank_mask:0xf bound_ctrl:0","row_shr:8 row_mask:0xf bank_mask:0xf bound_ctrl:0","row_bcast:15 row_mask:0xa bank_mask:0xf","row_bcast:31 row_mask:0xc bank_mask:0xf"]
def dppscan(v):
    for ctl in DPPS:
        e(f"  s_nop 1\n  v_add_u32_dpp v{v}, v{v}, v{v} {ctl}")
    e("  s_nop 1")
head("k1_sort_kernel")
e("""  s_cmp_gt_u32 s2, 256
  s_cbranch_scc1 L_k1_end
  s_load_dwordx4 s[4:7], s[0:1], 8
  s_load_dwordx4 s[16:19], s[0:1], 24   ; ew, w
  s_load_dwordx2 s[22:23], s[0:1], 56   ; ws
  s_cmp_eq_u32 s2, 256
  s_cbranch_scc1 L_k1_wt
  v_lshlrev_b32 v1, 2, v0
  v_lshlrev_b32 v2, 1, v0
  v_mov_b32 v4, 0
  v_cmp_gt_u32 vcc, 256, v0
  s_and_saveexec_b64 s[20:21], vcc
  ds_write_b32 v1, v4
  s_mov_b64 exec, s[20:21]
  s_waitcnt lgkmcnt(0)""")
srd(8,4,5,3200000)
srd(12,6,7,3200000)
srd(36,16,17,1600000)
srd(40,22,23,WS_END)
e("  s_mul_i32 s3, s2, 12500\n  s_mul_i32 s44, s2, 6250")
for i in range(4):
    e(f"  s_add_u32 s{24+i}, s3, {i*4096}")
    e(f"  s_add_u32 s{46+i}, s44, {i*2048}")
e("  v_cmp_gt_u32 vcc, 53, v0")
for i in range(4):
    if i==3: e("  s_and_saveexec_b64 s[20:21], vcc")
    e(f"  buffer_load_dword v{10+i}, v1, s[12:15], s{24+i} offen")
    e(f"  buffer_load_dword v{14+i}, v1, s[8:11], s{24+i} offen")
    e(f"  buffer_load_ushort v{18+i}, v2, s[36:39], s{46+i} offen")
e("""  s_mov_b64 exec, s[20:21]
  v_mov_b32 v3, 1
  s_barrier""")
for i in range(4):
    if i==3: e("  s_and_saveexec_b64 s[20:21], vcc")
    e(f"""  s_waitcnt vmcnt({3*(3-i)+2})
  v_mul_u32_u24 v4, 83887, v{10+i}
  v_lshrrev_b32 v4, 24, v4
  v_lshlrev_b32 v{22+i}, 2, v4
  ds_add_rtn_u32 v{26+i}, v{22+i}, v3 offset:{CNT}
  v_mul_u32_u24 v4, 200, v4
  v_sub_u32 v{10+i}, v{10+i}, v4""")
e(f"""  s_mov_b64 exec, s[20:21]
  s_waitcnt lgkmcnt(0)
  s_barrier
  v_cmp_gt_u32 vcc, 64, v0
  s_and_saveexec_b64 s[20:21], vcc
  s_cbranch_execz L_k1_noscan
  v_lshlrev_b32 v4, 4, v0
  ds_read_b128 v[40:43], v4 offset:{CNT}
  v_mov_b32 v48, 0
  s_waitcnt lgkmcnt(0)""")
for j in range(4):
    e(f"  v_add_u32 v{49+j}, v{48+j}, v{40+j}")
e("  v_mov_b32 v58, v52")
dppscan(58)
e("  v_sub_u32 v58, v58, v52")
for j in range(4):
    e(f"  v_add_u32 v{48+j}, v{48+j}, v58")
e(f"""  ds_write_b128 v4, v[48:51] offset:{CNT}
  s_lshl_b32 s3, s2, 10
  buffer_store_dwordx4 v[48:51], v4, s[40:43], s3 offen
L_k1_noscan:
  s_mov_b64 exec, s[20:21]
  s_waitcnt lgkmcnt(0)
  s_barrier
  v_cmp_gt_u32 vcc, 53, v0""")
for i in range(4):
    if i==3: e("  s_and_saveexec_b64 s[20:21], vcc")
    e(f"  ds_read_b32 v{30+i}, v{22+i} offset:{CNT}")
e("  s_waitcnt vmcnt(0) lgkmcnt(0)")
for i in [3,0,1,2]:
    e(f"""  v_add_u32 v4, v{30+i}, v{26+i}
  v_lshlrev_b32 v4, 3, v4
  v_lshl_or_b32 v{35+2*i}, v{18+i}, 16, v{10+i}
  v_mov_b32 v{34+2*i}, v{14+i}
  ds_write_b64 v4, v[{34+2*i}:{35+2*i}] offset:{STAGE}""")
    if i==3: e("  s_mov_b64 exec, s[20:21]")
e(f"""  s_waitcnt lgkmcnt(0)
  s_barrier
  v_lshlrev_b32 v4, 4, v0
  s_mul_i32 s3, s2, {CHB}
  s_add_u32 s3, s3, {OFF_REC}
  s_add_u32 s24, s3, 16384
  ds_read_b128 v[40:43], v4 offset:{STAGE}
  v_cmp_gt_u32 vcc, 539, v0
  s_and_saveexec_b64 s[20:21], vcc
  ds_read_b128 v[44:47], v4 offset:{STAGE+16384}
  s_waitcnt lgkmcnt(0)
  buffer_store_dwordx4 v[44:47], v4, s[40:43], s24 offen
  s_mov_b64 exec, s[20:21]
  buffer_store_dwordx4 v[40:43], v4, s[40:43], s3 offen
  s_endpgm
L_k1_wt:
  s_waitcnt lgkmcnt(0)""")
srd(8,18,19,16384)
srd(12,22,23,OFF_WF+16384)
e("""  v_lshrrev_b32 v4, 8, v0      ; mt
  v_bfe_u32 v5, v0, 6, 2       ; ks
  v_and_b32 v6, 15, v0
  v_bfe_u32 v7, v0, 4, 2       ; l>>4
  v_lshrrev_b32 v8, 2, v6      ; m>>2
  v_and_b32 v6, 3, v6          ; m&3
  v_lshl_add_u32 v6, v4, 2, v6 ; + mt*4
  v_lshl_add_u32 v6, v8, 4, v6 ; + (m>>2)*16 -> n
  v_lshlrev_b32 v5, 5, v5
  v_lshl_add_u32 v5, v7, 3, v5 ; k
  v_lshlrev_b32 v5, 7, v5      ; k*128
  v_lshl_add_u32 v5, v6, 1, v5 ; + n*2""")
for j in range(8):
    e(f"  buffer_load_ushort v{10+j}, v5, s[8:11], 0 offen offset:{j*128}")
e("  s_waitcnt vmcnt(0)")
for j in range(4):
    e(f"  v_lshl_or_b32 v{20+j}, v{11+2*j}, 16, v{10+2*j}")
e(f"""  v_lshlrev_b32 v4, 4, v0
  s_mov_b32 s3, {OFF_WF}
  buffer_store_dwordx4 v[20:23], v4, s[12:15], s3 offen
L_k1_end:
  s_endpgm""")
NB=2
DREG=[32,48]; RREG=[64,72]; NREG=[91,92]; SLAST=[50,52]
RT=120; ACC=80; CUR=88; NODE=90; L16=93; L32=94; VNEXT=95; VONE=96; TA=97; TB=98; JUNK=99; XP=106; WP=116
head("k4_main_kernel")
e(f"""  s_cmp_ge_u32 s2, {B}
  s_cbranch_scc1 L_k4_end
  s_load_dwordx2 s[4:5], s[0:1], 0
  s_load_dwordx2 s[6:7], s[0:1], 40
  s_load_dwordx2 s[18:19], s[0:1], 56
  v_lshlrev_b32 v1, 4, v0
  v_lshrrev_b32 v4, 6, v0
  v_and_b32 v5, 63, v0
  s_mov_b32 s48, 0x01010101
  s_mov_b32 s49, 0x01010101
  v_readfirstlane_b32 s24, v4
  s_lshl_b32 s3, s2, 2
  v_lshrrev_b32 v105, 2, v0          ; chunk g
  v_lshlrev_b32 v6, 10, v105
  s_waitcnt lgkmcnt(0)""")
srd(44,18,19,WS_END)
e(f"""  buffer_load_dwordx2 v[100:101], v6, s[44:47], s3 offen
  s_mov_b32 s3, {OFF_WF}
  buffer_load_dwordx4 v[{WP}:{WP+3}], v1, s[44:47], s3 offen""")
srd(8,4,5,6400000)
srd(12,6,7,6400000)
e(f"""  ; prefetch x rows for gemm
  v_and_b32 v9, 15, v5
  s_lshl_b32 s29, s24, 4
  v_add_u32 v9, s29, v9
  v_lshrrev_b32 v8, 4, v5           ; q
  s_mul_i32 s30, s2, {R*128}
  v_lshlrev_b32 v7, 7, v9
  v_lshl_add_u32 v7, v8, 4, v7
  v_cmp_gt_u32 vcc, {R}, v9
  s_and_saveexec_b64 s[20:21], vcc
  buffer_load_dwordx4 v[{XP}:{XP+3}], v7, s[8:11], s30 offen
  buffer_load_dwordx4 v[{XP+4}:{XP+7}], v7, s[8:11], s30 offen offset:64
  s_mov_b64 exec, s[20:21]
  v_mov_b32 v2, 0
  v_mov_b32 v3, 0
  v_mov_b32 v6, 0
  v_mov_b32 v7, 0
  v_mov_b32 v8, 0
  v_mov_b32 v9, 0""")
for i in range(3):
    e(f"  ds_write_b128 v1, v[6:9] offset:{i*16384}")
e(f"""  v_cmp_gt_u32 vcc, {(51456-49152)//16}, v0
  s_and_saveexec_b64 s[20:21], vcc
  ds_write_b128 v1, v[6:9] offset:49152
  s_mov_b64 exec, s[20:21]
  v_cmp_gt_u32 vcc, 4, v0
  s_and_saveexec_b64 s[20:21], vcc
  v_lshlrev_b32 v6, 3, v0
  v_mov_b32 v2, 0x01000000
  ds_write_b64 v6, v[2:3] offset:{DUMMY}
  v_mov_b32 v6, {MAXC}
  ds_write_b32 v6, v3
  s_mov_b64 exec, s[20:21]
  v_and_b32 v6, 7, v5
  v_lshlrev_b32 v{L32}, 5, v6
  v_lshlrev_b32 v{L16}, 4, v6
  v_mov_b32 v{VNEXT}, {NEXT}
  v_mov_b32 v{VONE}, 1
  v_add_u32 v{JUNK}, {JROW}, v{L32}
  v_and_b32 v103, 3, v0
  v_lshlrev_b32 v103, 1, v103        ; 2j
  v_mul_u32_u24 v104, {CHB}, v105
  v_lshl_add_u32 v104, v103, 3, v104 ; g*CHB + 16j
  s_mov_b32 s27, 0
  s_mov_b32 s26, {OFF_REC}
  s_waitcnt vmcnt(3)
  v_sub_u32 v102, v101, v100         ; cnt
  v_lshl_add_u32 v104, v100, 3, v104 ; + ls*8
L_k4_round:
  v_add_u32 v101, s27, v103""")
for i in range(4):
    e(f"""  v_add_u32 v6, {8*i}, v101
  v_cmp_gt_u32 vcc, v102, v6
  s_and_saveexec_b64 s[20:21], vcc
  buffer_load_dwordx4 v[{10+4*i}:{13+4*i}], v104, s[44:47], s26 offen offset:{64*i}
  s_mov_b64 exec, s[20:21]""")
NPF=(SCAP*8)//16
e(f"""  v_mov_b32 v6, 0x01000000
  v_mov_b32 v7, 0
  v_mov_b32 v8, 0x01000000
  v_mov_b32 v9, 0
  v_add_u32 v2, {SORTED}, v1""")
for i in range(NPF//1024):
    e(f"  ds_write_b128 v2, v[6:9] offset:{i*16384}")
e(f"""  v_cmp_gt_u32 vcc, {NPF%1024}, v0
  s_and_saveexec_b64 s[20:21], vcc
  v_add_u32 v2, {(NPF//1024)*16384}, v2
  ds_write_b128 v2, v[6:9]
  s_mov_b64 exec, s[20:21]
  v_cmp_gt_u32 vcc, 256, v0
  s_and_saveexec_b64 s[20:21], vcc
  v_lshlrev_b32 v6, 2, v0
  ds_write_b32 v6, v7 offset:{HIST}
  ds_write_b32 v{VNEXT}, v7
  s_mov_b64 exec, s[20:21]
  s_waitcnt lgkmcnt(0)
  s_barrier
  v_cmp_lt_u32 vcc, 32, v102
  s_and_saveexec_b64 s[20:21], vcc
  v_mov_b32 v6, {MAXC}
  ds_max_u32 v6, v102
  s_mov_b64 exec, s[20:21]""")
for i in range(4):
    for h in range(2):
        e(f"""  v_add_u32 v6, {8*i+h}, v101
  v_cmp_gt_u32 vcc, v102, v6
  s_and_saveexec_b64 s[20:21], vcc""")
        if h==0: e(f"  s_waitcnt vmcnt({3-i})")
        e(f"""  v_and_b32 v6, 0xff, v{11+4*i+2*h}
  v_lshlrev_b32 v6, 2, v6
  ds_add_rtn_u32 v{26+2*i+h}, v6, v{VONE} offset:{HIST}
  s_mov_b64 exec, s[20:21]""")
e(f"""  s_waitcnt lgkmcnt(0)
  s_barrier
  s_cmp_lg_u32 s24, 0
  s_cbranch_scc1 L_k4_noscan
  v_lshlrev_b32 v6, 4, v5
  ds_read_b128 v[42:45], v6 offset:{HIST}
  v_cmp_gt_u32 vcc, 50, v5
  s_waitcnt lgkmcnt(0)""")
for j in range(4):
    e(f"""  v_add_u32 v{46+j}, 3, v{42+j}
  v_and_b32 v{46+j}, -4, v{46+j}
  v_max_u32 v{46+j}, 4, v{46+j}
  v_cndmask_b32 v{46+j}, 0, v{46+j}, vcc
  v_lshlrev_b32 v{46+j}, 3, v{46+j}""")
e("""  v_add_u32 v50, v46, v47
  v_add_u32 v51, v48, v49
  v_add_u32 v50, v50, v51
  v_mov_b32 v51, v50""")
dppscan(51)
e(f"""  v_sub_u32 v51, v51, v50
  v_add_u32 v52, {SORTED}, v51       ; start0
  v_add_u32 v53, v52, v46            ; end0
  v_mov_b32 v54, v53
  v_add_u32 v55, v54, v47
  v_mov_b32 v56, v55
  v_add_u32 v57, v56, v48
  v_mov_b32 v58, v57
  v_add_u32 v59, v58, v49
  v_cmp_eq_u32 vcc, 50, v5
  v_mov_b32 v6, {DUMMY}
  v_mov_b32 v8, {DUMMY+32}
  v_cndmask_b32 v52, v52, v6, vcc
  v_cndmask_b32 v53, v53, v8, vcc
  v_lshlrev_b32 v6, 5, v5
  ds_write_b128 v6, v[52:55] offset:{ST}
  ds_write_b128 v6, v[56:59] offset:{ST+16}
L_k4_noscan:
  s_waitcnt lgkmcnt(0)
  s_barrier""")
for i in range(4):
    for h in range(2):
        e(f"""  v_and_b32 v6, 0xff, v{11+4*i+2*h}
  v_lshlrev_b32 v6, 3, v6
  ds_read_b32 v{34+2*i+h}, v6 offset:{ST}""")
e(f"""  v_mov_b32 v6, {MAXC}
  ds_read_b32 v100, v6
  v_add_u32 v6, {WL}, v1
  ds_write_b128 v6, v[{WP}:{WP+3}]""")
for i in range(4):
    for h in range(2):
        e(f"""  v_add_u32 v6, {8*i+h}, v101
  v_cmp_gt_u32 vcc, v102, v6
  s_and_saveexec_b64 s[20:21], vcc
  v_and_b32 v{11+4*i+2*h}, 0xffff0000, v{11+4*i+2*h}
  s_waitcnt lgkmcnt({9-2*i-h})
  v_lshl_add_u32 v6, v{26+2*i+h}, 3, v{34+2*i+h}
  ds_write_b64 v6, v[{10+4*i+2*h}:{11+4*i+2*h}]
  s_mov_b64 exec, s[20:21]""")
e(f"""  s_waitcnt lgkmcnt(0)
  s_barrier
  v_mov_b32 v{CUR}, 0
  v_mov_b32 v{CUR+1}, 0""")
for r in range(8): e(f"  v_mov_b32 v{ACC+r}, 0")
lab=[0]
def issue(X):
    d = DREG[X]; r = RREG[X]; n = NREG[X]; sl = SLAST[X]
    lab[0]+=1
    e(f"""  v_cmp_eq_u32 vcc, v{CUR}, v{CUR+1}
  s_and_saveexec_b64 s[20:21], vcc
  s_cbranch_execz L_k4_ng{lab[0]}
  s_mov_b64 s[54:55], exec
  s_and_b64 exec, exec, s[48:49]
  ds_add_rtn_u32 v{TA}, v{VNEXT}, v{VONE}
  s_mov_b64 exec, s[54:55]
  s_waitcnt lgkmcnt(0)
  ds_swizzle_b32 v{TA}, v{TA} offset:0x18
  s_waitcnt lgkmcnt(0)
  v_min_u32 v{TA}, {R}, v{TA}
  v_lshlrev_b32 v{TB}, 3, v{TA}
  ds_read_b64 v[{CUR}:{CUR+1}], v{TB} offset:{ST}
  v_lshl_add_u32 v{NODE}, v{TA}, 8, v{L32}
  s_waitcnt lgkmcnt(0)
L_k4_ng{lab[0]}:
  s_mov_b64 exec, s[20:21]
  ds_read_b128 v[{r}:{r+3}], v{CUR}
  ds_read_b128 v[{r+4}:{r+7}], v{CUR} offset:16
  v_add_u32 v{CUR}, 32, v{CUR}
  v_mov_b32 v{n}, v{NODE}
  v_cmp_eq_u32 s[{sl}:{sl+1}], v{CUR}, v{CUR+1}""")
    for k in range(4):
        if k==0: e("  s_waitcnt lgkmcnt(1)")
        if k==2: e("  s_waitcnt lgkmcnt(0)")
        t = TA if k%2==0 else TB
        e(f"""  v_lshl_add_u32 v{t}, v{r+2*k}, 7, v{L16}
  buffer_load_dwordx4 v[{d+4*k}:{d+4*k+3}], v{t}, s[8:11], 0 offen""")
def consume(X):
    d = DREG[X]; r = RREG[X]; n = NREG[X]; sl = SLAST[X]
    lab[0]+=1
    for k in range(4):
        t = TA if k%2==0 else TB
        e(f"""  v_lshrrev_b32 v{t}, 16, v{r+2*k+1}
  s_waitcnt vmcnt({4*(NB-1)+3-k})""")
        for j in range(4):
            e(f"""  v_dot2c_f32_bf16 v{ACC+2*j}, v{d+4*k+j}, v{t}
  v_dot2c_f32_bf16 v{ACC+1+2*j}, v{d+4*k+j}, v{r+2*k+1}""")
    e(f"""  s_and_saveexec_b64 s[20:21], s[{sl}:{sl+1}]
  s_cbranch_execz L_k4_nf{lab[0]}
  s_cmp_eq_u32 s27, 0
  s_cbranch_scc1 L_k4_dw{lab[0]}
  ds_read_b128 v[{RT}:{RT+3}], v{n}
  ds_read_b128 v[{RT+4}:{RT+7}], v{n} offset:16
  s_waitcnt lgkmcnt(0)""")
    for q in range(8): e(f"  v_add_f32 v{ACC+q}, v{RT+q}, v{ACC+q}")
    e(f"""L_k4_dw{lab[0]}:
  ds_write_b128 v{n}, v[{ACC}:{ACC+3}]
  ds_write_b128 v{n}, v[{ACC+4}:{ACC+7}] offset:16
  s_nop 1""")
    for q in range(8): e(f"  v_mov_b32 v{ACC+q}, 0")
    e(f"""L_k4_nf{lab[0]}:
  s_mov_b64 exec, s[20:21]""")
for X in range(NB-1): issue(X)
e("L_k4_loop:")
for X in range(NB):
    issue((X+NB-1)%NB); consume(X)
    e(f"  v_cmp_ne_u32 vcc, v{JUNK}, v{NREG[(X+1)%NB]}")
    if X<NB-1: e("  s_cbranch_vccz L_k4_gdone")
    else: e("  s_cbranch_vccnz L_k4_loop")
e(f"""L_k4_gdone:
  s_waitcnt lgkmcnt(0)
  s_barrier
  v_readfirstlane_b32 s23, v100
  s_add_u32 s27, s27, 32
  s_add_u32 s26, s26, 256
  s_cmp_lt_u32 s27, s23
  s_cbranch_scc1 L_k4_round
  s_cmp_ge_u32 s24, 13
  s_cbranch_scc1 L_k4_end
  v_lshlrev_b32 v8, 4, v5
  v_add_u32 v8, {WL}, v8
  v_and_b32 v9, 15, v5
  s_lshl_b32 s29, s24, 4
  v_add_u32 v9, s29, v9
  v_lshrrev_b32 v10, 4, v5          ; q
  v_lshlrev_b32 v11, 7, v9
  s_waitcnt vmcnt(0)""")
for r in range(8): e(f"  v_mov_b32 v{16+r}, v{XP+r}")
for f in range(16):
    e(f"  ds_read_b128 v[{64+4*f}:{67+4*f}], v8 offset:{f*1024}")
e("""  v_lshlrev_b32 v13, 8, v9
  v_lshl_add_u32 v13, v10, 5, v13
  ds_read_b128 v[24:27], v13
  ds_read_b128 v[28:31], v13 offset:16
  ds_read_b128 v[32:35], v13 offset:128
  ds_read_b128 v[36:39], v13 offset:144
  s_waitcnt lgkmcnt(0)""")
for h in range(2):
    for j in range(4):
        e(f"  v_cvt_pk_bf16_f32 v{40+4*h+j}, v{24+8*h+2*j}, v{25+8*h+2*j}")
for mt in range(4):
    for r in range(4): e(f"  v_mov_b32 v{48+4*mt+r}, 0")
e("  s_nop 1")
bsrc=[16,20,40,44]
for ks in range(4):
    for mt in range(4):
        f=mt*4+ks
        e(f"  v_mfma_f32_16x16x32_bf16 v[{48+4*mt}:{51+4*mt}], v[{64+4*f}:{67+4*f}], v[{bsrc[ks]}:{bsrc[ks]+3}], v[{48+4*mt}:{51+4*mt}]")
e(f"""  s_nop 7
  s_nop 7
  v_lshl_add_u32 v12, v10, 5, v11
  v_cmp_gt_u32 vcc, {R}, v9
  s_and_saveexec_b64 s[20:21], vcc""")
for mt in range(4):
    e(f"""  v_cvt_pk_bf16_f32 v{24+2*mt}, v{48+4*mt}, v{49+4*mt}
  v_cvt_pk_bf16_f32 v{25+2*mt}, v{50+4*mt}, v{51+4*mt}""")
e("""  buffer_store_dwordx4 v[24:27], v12, s[12:15], s30 offen
  buffer_store_dwordx4 v[28:31], v12, s[12:15], s30 offen offset:16""")
e("""L_k4_end:
  s_endpgm""")
e('.section .rodata,"a"')
for name,nv in (("k1_sort_kernel",64),("k4_main_kernel",128)):
    e(f""".p2align 6
.amdhsa_kernel {name}
  .amdhsa_next_free_vgpr {nv}
  .amdhsa_next_free_sgpr 80
  .amdhsa_accum_offset {nv}
  .amdhsa_group_segment_fixed_size 0
  .amdhsa_kernarg_size 64
  .amdhsa_user_sgpr_count 2
  .amdhsa_user_sgpr_kernarg_segment_ptr 1
  .amdhsa_system_sgpr_workgroup_id_x 1
.end_amdhsa_kernel""")
open(OUT,'w').write("\n".join(o)+"\n")
```

```python
import sys
HDR = open('standalone__spectral_conv_chebnet__graph.s.ref').read().split('; Override launch')[0]
OUT = sys.argv[1] if len(sys.argv) > 1 else 'standalone__spectral_conv_chebnet__graph.s'
G=256; CH=3125; R=200; B=250; CHB=25088
OFF_C=0; OFF_WF=0x80000; OFF_REC=0x100000
WS_END=OFF_REC+G*CHB
o=[]
def e(s): o.append(s)
T1=0; HIST=51456; NEXT=52480; MAXC=52488; OVF=52492; SORTED=52544; CAPN=48; SLOT=CAPN*8
WL=SORTED+(R+1)*SLOT; LDS4=WL+16384
assert LDS4<=163840 and WL%16==0
JROW=R*256
CNT=0; STAGE=1024; LDS1=1024+25088
e(HDR.rstrip())
e(f"; @launch kernel=k1_sort_kernel grid=(257,1,1) block=(1024,1,1) lds={LDS1}")
e(f"; @launch kernel=k4_main_kernel grid=(250,1,1) block=(1024,1,1) lds={LDS4}")
e('.amdgcn_target "amdgcn-amd-amdhsa--gfx950"')
e('.text')
def srd(d, lo, hi, size):
    e(f"  s_mov_b32 s{d}, s{lo}\n  s_mov_b32 s{d+1}, s{hi}\n  s_mov_b32 s{d+2}, {size}\n  s_mov_b32 s{d+3}, 0x00020000")
def head(name):
    e(f".globl {name}\n.p2align 8\n.type {name},@function\n{name}:")
DPPS=["row_shr:1 row_mask:0xf bank_mask:0xf bound_ctrl:0","row_shr:2 row_mask:0xf bank_mask:0xf bound_ctrl:0","row_shr:4 row_mask:0xf bank_mask:0xf bound_ctrl:0","row_shr:8 row_mask:0xf bank_mask:0xf bound_ctrl:0","row_bcast:15 row_mask:0xa bank_mask:0xf","row_bcast:31 row_mask:0xc bank_mask:0xf"]
def dppscan(v):
    for ctl in DPPS:
        e(f"  s_nop 1\n  v_add_u32_dpp v{v}, v{v}, v{v} {ctl}")
    e("  s_nop 1")
head("k1_sort_kernel")
e("""  s_cmp_gt_u32 s2, 256
  s_cbranch_scc1 L_k1_end
  s_load_dwordx4 s[4:7], s[0:1], 8
  s_load_dwordx4 s[16:19], s[0:1], 24   ; ew, w
  s_load_dwordx2 s[22:23], s[0:1], 56   ; ws
  s_cmp_eq_u32 s2, 256
  s_cbranch_scc1 L_k1_wt
  v_lshlrev_b32 v1, 2, v0
  v_lshlrev_b32 v2, 1, v0
  v_mov_b32 v4, 0
  v_cmp_gt_u32 vcc, 256, v0
  s_and_saveexec_b64 s[20:21], vcc
  ds_write_b32 v1, v4
  s_mov_b64 exec, s[20:21]
  s_waitcnt lgkmcnt(0)""")
srd(8,4,5,3200000)
srd(12,6,7,3200000)
srd(36,16,17,1600000)
srd(40,22,23,WS_END)
e("  s_mul_i32 s3, s2, 12500\n  s_mul_i32 s44, s2, 6250")
for i in range(4):
    e(f"  s_add_u32 s{24+i}, s3, {i*4096}")
    e(f"  s_add_u32 s{46+i}, s44, {i*2048}")
e("  v_cmp_gt_u32 vcc, 53, v0")
for i in range(4):
    if i==3: e("  s_and_saveexec_b64 s[20:21], vcc")
    e(f"  buffer_load_dword v{10+i}, v1, s[12:15], s{24+i} offen")
    e(f"  buffer_load_dword v{14+i}, v1, s[8:11], s{24+i} offen")
    e(f"  buffer_load_ushort v{18+i}, v2, s[36:39], s{46+i} offen")
e("""  s_mov_b64 exec, s[20:21]
  v_mov_b32 v3, 1
  s_barrier""")
for i in range(4):
    if i==3: e("  s_and_saveexec_b64 s[20:21], vcc")
    e(f"""  s_waitcnt vmcnt({3*(3-i)+2})
  v_mul_u32_u24 v4, 83887, v{10+i}
  v_lshrrev_b32 v4, 24, v4
  v_lshlrev_b32 v{22+i}, 2, v4
  ds_add_rtn_u32 v{26+i}, v{22+i}, v3 offset:{CNT}
  v_mul_u32_u24 v4, 200, v4
  v_sub_u32 v{10+i}, v{10+i}, v4""")
e(f"""  s_mov_b64 exec, s[20:21]
  s_waitcnt lgkmcnt(0)
  s_barrier
  v_cmp_gt_u32 vcc, 64, v0
  s_and_saveexec_b64 s[20:21], vcc
  s_cbranch_execz L_k1_noscan
  v_lshlrev_b32 v4, 4, v0
  ds_read_b128 v[40:43], v4 offset:{CNT}
  v_mov_b32 v48, 0
  s_waitcnt lgkmcnt(0)""")
for j in range(4):
    e(f"  v_add_u32 v{49+j}, v{48+j}, v{40+j}")
e("  v_mov_b32 v58, v52")
dppscan(58)
e("  v_sub_u32 v58, v58, v52")
for j in range(4):
    e(f"  v_add_u32 v{48+j}, v{48+j}, v58")
e(f"""  ds_write_b128 v4, v[48:51] offset:{CNT}
  v_lshl_or_b32 v52, v40, 16, v48
  v_lshl_or_b32 v53, v41, 16, v49
  v_lshl_or_b32 v54, v42, 16, v50
  v_lshl_or_b32 v55, v43, 16, v51
  v_lshlrev_b32 v4, 12, v0
  s_and_b32 s3, s2, 7
  s_lshl_b32 s3, s3, 5
  s_lshr_b32 s25, s2, 3
  s_add_u32 s3, s3, s25
  s_lshl_b32 s3, s3, 4
  buffer_store_dwordx4 v[52:55], v4, s[40:43], s3 offen
L_k1_noscan:
  s_mov_b64 exec, s[20:21]
  s_waitcnt lgkmcnt(0)
  s_barrier
  v_cmp_gt_u32 vcc, 53, v0""")
for i in range(4):
    if i==3: e("  s_and_saveexec_b64 s[20:21], vcc")
    e(f"  ds_read_b32 v{30+i}, v{22+i} offset:{CNT}")
e("  s_waitcnt vmcnt(0) lgkmcnt(0)")
for i in [3,0,1,2]:
    e(f"""  v_add_u32 v4, v{30+i}, v{26+i}
  v_lshlrev_b32 v4, 3, v4
  v_lshl_or_b32 v{35+2*i}, v{18+i}, 16, v{10+i}
  v_mov_b32 v{34+2*i}, v{14+i}
  ds_write_b64 v4, v[{34+2*i}:{35+2*i}] offset:{STAGE}""")
    if i==3: e("  s_mov_b64 exec, s[20:21]")
e(f"""  s_waitcnt lgkmcnt(0)
  s_barrier
  v_lshlrev_b32 v4, 4, v0
  s_mul_i32 s3, s2, {CHB}
  s_add_u32 s3, s3, {OFF_REC}
  s_add_u32 s24, s3, 16384
  ds_read_b128 v[40:43], v4 offset:{STAGE}
  v_cmp_gt_u32 vcc, 539, v0
  s_and_saveexec_b64 s[20:21], vcc
  ds_read_b128 v[44:47], v4 offset:{STAGE+16384}
  s_waitcnt lgkmcnt(0)
  buffer_store_dwordx4 v[44:47], v4, s[40:43], s24 offen
  s_mov_b64 exec, s[20:21]
  buffer_store_dwordx4 v[40:43], v4, s[40:43], s3 offen
  s_endpgm
L_k1_wt:
  s_waitcnt lgkmcnt(0)""")
srd(8,18,19,16384)
srd(12,22,23,OFF_WF+16384)
e("""  v_lshrrev_b32 v4, 8, v0      ; mt
  v_bfe_u32 v5, v0, 6, 2       ; ks
  v_and_b32 v6, 15, v0
  v_bfe_u32 v7, v0, 4, 2       ; l>>4
  v_lshrrev_b32 v8, 2, v6      ; m>>2
  v_and_b32 v6, 3, v6          ; m&3
  v_lshl_add_u32 v6, v4, 2, v6 ; + mt*4
  v_lshl_add_u32 v6, v8, 4, v6 ; + (m>>2)*16 -> n
  v_lshlrev_b32 v5, 5, v5
  v_lshl_add_u32 v5, v7, 3, v5 ; k
  v_lshlrev_b32 v5, 7, v5      ; k*128
  v_lshl_add_u32 v5, v6, 1, v5 ; + n*2""")
for j in range(8):
    e(f"  buffer_load_ushort v{10+j}, v5, s[8:11], 0 offen offset:{j*128}")
e("  s_waitcnt vmcnt(0)")
for j in range(4):
    e(f"  v_lshl_or_b32 v{20+j}, v{11+2*j}, 16, v{10+2*j}")
e(f"""  v_lshlrev_b32 v4, 4, v0
  s_mov_b32 s3, {OFF_WF}
  buffer_store_dwordx4 v[20:23], v4, s[12:15], s3 offen
L_k1_end:
  s_endpgm""")
NB=2
DREG=[32,48]; RREG=[64,72]; NREG=[91,92]; SLAST=[50,52]
RT=120; ACC=80; CUR=88; NODE=90; L16=93; L32=94; VNEXT=95; VONE=96; TA=97; TB=98; JUNK=99; XP=106; WP=116
head("k4_main_kernel")
e(f"""  s_cmp_ge_u32 s2, {B}
  s_cbranch_scc1 L_k4_end
  s_load_dwordx2 s[4:5], s[0:1], 0
  s_load_dwordx2 s[6:7], s[0:1], 40
  s_load_dwordx2 s[18:19], s[0:1], 56
  v_lshlrev_b32 v1, 4, v0
  v_lshrrev_b32 v4, 6, v0
  v_and_b32 v5, 63, v0
  s_mov_b32 s48, 0x01010101
  s_mov_b32 s49, 0x01010101
  v_readfirstlane_b32 s24, v4
  s_lshr_b32 s3, s2, 2
  s_lshl_b32 s3, s3, 12
  s_and_b32 s25, s2, 3
  s_lshl_b32 s25, s25, 2
  s_add_u32 s3, s3, s25
  v_lshrrev_b32 v6, 2, v0            ; piece p
  v_and_b32 v105, 31, v6
  v_lshrrev_b32 v7, 5, v6
  v_lshl_add_u32 v105, v105, 3, v7   ; chunk g
  v_lshlrev_b32 v6, 4, v6
  s_waitcnt lgkmcnt(0)""")
srd(44,18,19,WS_END)
e(f"""  buffer_load_dword v101, v6, s[44:47], s3 offen""")
srd(8,4,5,6400000)
srd(12,6,7,6400000)
M=lambda k: f"s[{64+2*k}:{65+2*k}]"
e(f"""  ; prefetch x rows for gemm
  v_and_b32 v9, 15, v5
  s_lshl_b32 s29, s24, 4
  v_add_u32 v9, s29, v9
  v_lshrrev_b32 v8, 4, v5           ; q
  s_mul_i32 s30, s2, {R*128}
  v_lshlrev_b32 v7, 7, v9
  v_lshl_add_u32 v114, v8, 4, v7
  v_cmp_gt_u32 vcc, {R}, v9
  s_mov_b64 s[36:37], vcc
  v_mov_b32 v3, 0
  v_mov_b32 v6, {MAXC}
  ds_write_b32 v6, v3
  v_and_b32 v6, 7, v5
  v_lshlrev_b32 v{L32}, 5, v6
  v_lshlrev_b32 v{L16}, 4, v6
  v_mov_b32 v{VNEXT}, {NEXT}
  v_mov_b32 v{VONE}, 1
  v_add_u32 v{JUNK}, {JROW}, v{L32}
  v_and_b32 v103, 3, v0
  v_lshlrev_b32 v103, 1, v103        ; 2j
  v_mul_u32_u24 v104, {CHB}, v105
  v_lshl_add_u32 v104, v103, 3, v104 ; g*CHB + 16j
  s_mov_b32 s27, 0
  s_mov_b32 s26, {OFF_REC}
  s_mov_b32 s31, 0
  s_waitcnt vmcnt(0)
  v_lshrrev_b32 v102, 16, v101       ; cnt
  v_and_b32 v100, 0xffff, v101       ; ls
  v_lshl_add_u32 v104, v100, 3, v104 ; + ls*8
L_k4_round:
  v_add_u32 v101, s27, v103""")
for i in range(4):
    e(f"""  v_add_u32 v6, {8*i}, v101
  v_cmp_gt_u32 {M(2*i)}, v102, v6
  v_add_u32 v6, {8*i+1}, v101
  v_cmp_gt_u32 {M(2*i+1)}, v102, v6
  s_mov_b64 exec, {M(2*i)}
  buffer_load_dwordx4 v[{10+4*i}:{13+4*i}], v104, s[44:47], s26 offen offset:{64*i}
  s_mov_b64 exec, -1""")
NPF=((R+1)*SLOT)//16
e(f"""L_k4_iter:
  v_mov_b32 v6, 0x01000000
  v_mov_b32 v7, 0
  v_mov_b32 v8, 0x01000000
  v_mov_b32 v9, 0
  v_add_u32 v2, {SORTED}, v1""")
for i in range(NPF//1024):
    e(f"  ds_write_b128 v2, v[6:9] offset:{i*16384}")
e(f"""  v_cmp_gt_u32 vcc, {NPF%1024}, v0
  s_and_saveexec_b64 s[20:21], vcc
  v_add_u32 v2, {(NPF//1024)*16384}, v2
  ds_write_b128 v2, v[6:9]
  s_mov_b64 exec, s[20:21]
  v_cmp_gt_u32 vcc, 256, v0
  s_and_saveexec_b64 s[20:21], vcc
  v_lshlrev_b32 v6, 2, v0
  ds_write_b32 v6, v7 offset:{HIST}
  ds_write_b32 v{VNEXT}, v7
  ds_write_b32 v{VNEXT}, v7 offset:{OVF-NEXT}
  s_mov_b64 exec, s[20:21]
  s_waitcnt lgkmcnt(0)
  s_barrier
  s_mov_b32 s3, {OFF_WF}
  buffer_load_dwordx4 v[{WP}:{WP+3}], v1, s[44:47], s3 offen
  s_mov_b64 exec, s[36:37]
  buffer_load_dwordx4 v[{XP}:{XP+3}], v114, s[8:11], s30 offen
  buffer_load_dwordx4 v[{XP+4}:{XP+7}], v114, s[8:11], s30 offen offset:64
  s_mov_b64 exec, -1
  v_cmp_lt_u32 vcc, 32, v102
  s_and_saveexec_b64 s[20:21], vcc
  ds_max_u32 v{VNEXT}, v102 offset:{MAXC-NEXT}""")
for i in range(4):
    if i>=2: e(f"  s_or_b64 s[20:21], {M(2*i)}, {M(2*i+1)}\n  s_cbranch_scc0 L_k4_sh{i}")
    for h in range(2):
        k=2*i+h
        e(f"  s_mov_b64 exec, {M(k)}")
        if h==0: e(f"  s_waitcnt vmcnt({6-i})")
        e(f"""  v_and_b32 v6, 0xff, v{11+4*i+2*h}
  v_lshlrev_b32 v{34+k}, 2, v6
  ds_add_rtn_u32 v{26+k}, v{34+k}, v{VONE} offset:{HIST}""")
    if i>=2: e(f"L_k4_sh{i}:")
e("  s_waitcnt lgkmcnt(0)")
for i in range(4):
    if i>=2: e(f"  s_or_b64 s[20:21], {M(2*i)}, {M(2*i+1)}\n  s_cbranch_scc0 L_k4_ss{i}")
    for h in range(2):
        k=2*i+h
        t=2 if h==0 else 8
        e(f"""  s_mov_b64 exec, {M(k)}
  v_cmp_gt_u32 vcc, {CAPN}, v{26+k}
  v_mul_u32_u24 v6, {SLOT//4}, v{34+k}
  v_lshl_add_u32 v6, v{26+k}, 3, v6
  v_mov_b32 v{t}, v{10+4*i+2*h}
  v_and_b32 v{t+1}, 0xffff0000, v{11+4*i+2*h}
  s_andn2_b64 {M(k)}, {M(k)}, vcc
  s_mov_b64 exec, vcc
  ds_write_b64 v6, v[{t}:{t+1}] offset:{SORTED}""")
    if i>=2: e(f"L_k4_ss{i}:")
e(f"  s_mov_b64 exec, -1\n  s_or_b64 s[20:21], {M(0)}, {M(1)}")
for k in range(2,8): e(f"  s_or_b64 s[20:21], s[20:21], {M(k)}")
e(f"""  s_cbranch_scc0 L_k4_noovf
  ds_write_b32 v{VNEXT}, v{VONE} offset:{OVF-NEXT}
L_k4_noovf:
  s_waitcnt lgkmcnt(0)
  s_barrier
  ds_read_b64 v[100:101], v{VNEXT} offset:{MAXC-NEXT}
  v_add_u32 v6, {WL}, v1
  s_waitcnt vmcnt(2)
  ds_write_b128 v6, v[{WP}:{WP+3}]
  v_mov_b32 v{CUR}, 0
  v_mov_b32 v{CUR+1}, 0""")
for r in range(8): e(f"  v_mov_b32 v{ACC+r}, 0")
lab=[0]
def issue(X):
    d = DREG[X]; r = RREG[X]; n = NREG[X]; sl = SLAST[X]
    lab[0]+=1
    e(f"""  v_cmp_eq_u32 vcc, v{CUR}, v{CUR+1}
  s_and_saveexec_b64 s[20:21], vcc
  s_cbranch_execz L_k4_ng{lab[0]}
  s_mov_b64 s[54:55], exec
  s_and_b64 exec, exec, s[48:49]
  ds_add_rtn_u32 v{TA}, v{VNEXT}, v{VONE}
  s_mov_b64 exec, s[54:55]
  s_waitcnt lgkmcnt(0)
  ds_swizzle_b32 v{TA}, v{TA} offset:0x18
  s_waitcnt lgkmcnt(0)
  v_min_u32 v{TA}, {R}, v{TA}
  v_lshlrev_b32 v{TB}, 2, v{TA}
  ds_read_b32 v{CUR+1}, v{TB} offset:{HIST}
  v_mul_u32_u24 v{CUR}, {SLOT}, v{TA}
  v_add_u32 v{CUR}, {SORTED}, v{CUR}
  v_lshl_add_u32 v{NODE}, v{TA}, 8, v{L32}
  s_waitcnt lgkmcnt(0)
  v_min_u32 v{CUR+1}, {CAPN}, v{CUR+1}
  v_add_u32 v{CUR+1}, 3, v{CUR+1}
  v_and_b32 v{CUR+1}, -4, v{CUR+1}
  v_max_u32 v{CUR+1}, 4, v{CUR+1}
  v_lshl_add_u32 v{CUR+1}, v{CUR+1}, 3, v{CUR}
L_k4_ng{lab[0]}:
  s_mov_b64 exec, s[20:21]
  ds_read_b128 v[{r}:{r+3}], v{CUR}
  ds_read_b128 v[{r+4}:{r+7}], v{CUR} offset:16
  v_add_u32 v{CUR}, 32, v{CUR}
  v_mov_b32 v{n}, v{NODE}
  v_cmp_eq_u32 s[{sl}:{sl+1}], v{CUR}, v{CUR+1}""")
    for k in range(4):
        if k==0: e("  s_waitcnt lgkmcnt(1)")
        if k==2: e("  s_waitcnt lgkmcnt(0)")
        t = TA if k%2==0 else TB
        e(f"""  v_lshl_add_u32 v{t}, v{r+2*k}, 7, v{L16}
  buffer_load_dwordx4 v[{d+4*k}:{d+4*k+3}], v{t}, s[8:11], 0 offen""")
def consume(X):
    d = DREG[X]; r = RREG[X]; n = NREG[X]; sl = SLAST[X]
    lab[0]+=1
    for k in range(4):
        t = TA if k%2==0 else TB
        e(f"""  v_lshrrev_b32 v{t}, 16, v{r+2*k+1}
  s_waitcnt vmcnt({4*(NB-1)+3-k})""")
        for j in range(4):
            e(f"""  v_dot2c_f32_bf16 v{ACC+2*j}, v{d+4*k+j}, v{t}
  v_dot2c_f32_bf16 v{ACC+1+2*j}, v{d+4*k+j}, v{r+2*k+1}""")
    e(f"""  s_and_saveexec_b64 s[20:21], s[{sl}:{sl+1}]
  s_cbranch_execz L_k4_nf{lab[0]}
  s_cmp_eq_u32 s31, 0
  s_cbranch_scc1 L_k4_dw{lab[0]}
  ds_read_b128 v[{RT}:{RT+3}], v{n}
  ds_read_b128 v[{RT+4}:{RT+7}], v{n} offset:16
  s_waitcnt lgkmcnt(0)""")
    for q in range(8): e(f"  v_add_f32 v{ACC+q}, v{RT+q}, v{ACC+q}")
    e(f"""L_k4_dw{lab[0]}:
  ds_write_b128 v{n}, v[{ACC}:{ACC+3}]
  ds_write_b128 v{n}, v[{ACC+4}:{ACC+7}] offset:16
  s_nop 1""")
    for q in range(8): e(f"  v_mov_b32 v{ACC+q}, 0")
    e(f"""L_k4_nf{lab[0]}:
  s_mov_b64 exec, s[20:21]""")
for X in range(NB-1): issue(X)
e("L_k4_loop:")
for X in range(NB):
    issue((X+NB-1)%NB); consume(X)
    e(f"  v_cmp_ne_u32 vcc, v{JUNK}, v{NREG[(X+1)%NB]}")
    if X<NB-1: e("  s_cbranch_vccz L_k4_gdone")
    else: e("  s_cbranch_vccnz L_k4_loop")
e(f"""L_k4_gdone:
  s_waitcnt lgkmcnt(0)
  s_barrier
  s_mov_b32 s31, 1
  v_readfirstlane_b32 s23, v100
  v_readfirstlane_b32 s22, v101
  s_cmp_lg_u32 s22, 0
  s_cbranch_scc1 L_k4_iter
  s_add_u32 s27, s27, 32
  s_add_u32 s26, s26, 256
  s_cmp_lt_u32 s27, s23
  s_cbranch_scc1 L_k4_round
  s_cmp_ge_u32 s24, 13
  s_cbranch_scc1 L_k4_end
  v_lshlrev_b32 v8, 4, v5
  v_add_u32 v8, {WL}, v8
  v_and_b32 v9, 15, v5
  s_lshl_b32 s29, s24, 4
  v_add_u32 v9, s29, v9
  v_lshrrev_b32 v10, 4, v5          ; q
  v_lshlrev_b32 v11, 7, v9
  s_waitcnt vmcnt(0)""")
for r in range(8): e(f"  v_mov_b32 v{16+r}, v{XP+r}")
for f in range(16):
    e(f"  ds_read_b128 v[{64+4*f}:{67+4*f}], v8 offset:{f*1024}")
e("""  v_lshlrev_b32 v13, 8, v9
  v_lshl_add_u32 v13, v10, 5, v13
  ds_read_b128 v[24:27], v13
  ds_read_b128 v[28:31], v13 offset:16
  ds_read_b128 v[32:35], v13 offset:128
  ds_read_b128 v[36:39], v13 offset:144
  s_waitcnt lgkmcnt(0)""")
for h in range(2):
    for j in range(4):
        e(f"  v_cvt_pk_bf16_f32 v{40+4*h+j}, v{24+8*h+2*j}, v{25+8*h+2*j}")
for mt in range(4):
    for r in range(4): e(f"  v_mov_b32 v{48+4*mt+r}, 0")
e("  s_nop 1")
bsrc=[16,20,40,44]
for ks in range(4):
    for mt in range(4):
        f=mt*4+ks
        e(f"  v_mfma_f32_16x16x32_bf16 v[{48+4*mt}:{51+4*mt}], v[{64+4*f}:{67+4*f}], v[{bsrc[ks]}:{bsrc[ks]+3}], v[{48+4*mt}:{51+4*mt}]")
e(f"""  s_nop 7
  s_nop 7
  v_lshl_add_u32 v12, v10, 5, v11
  v_cmp_gt_u32 vcc, {R}, v9
  s_and_saveexec_b64 s[20:21], vcc""")
for mt in range(4):
    e(f"""  v_cvt_pk_bf16_f32 v{24+2*mt}, v{48+4*mt}, v{49+4*mt}
  v_cvt_pk_bf16_f32 v{25+2*mt}, v{50+4*mt}, v{51+4*mt}""")
e("""  buffer_store_dwordx4 v[24:27], v12, s[12:15], s30 offen
  buffer_store_dwordx4 v[28:31], v12, s[12:15], s30 offen offset:16""")
e("""L_k4_end:
  s_endpgm""")
e('.section .rodata,"a"')
for name,nv in (("k1_sort_kernel",64),("k4_main_kernel",128)):
    e(f""".p2align 6
.amdhsa_kernel {name}
  .amdhsa_next_free_vgpr {nv}
  .amdhsa_next_free_sgpr 80
  .amdhsa_accum_offset {nv}
  .amdhsa_group_segment_fixed_size 0
  .amdhsa_kernarg_size 64
  .amdhsa_user_sgpr_count 2
  .amdhsa_user_sgpr_kernarg_segment_ptr 1
  .amdhsa_system_sgpr_workgroup_id_x 1
.end_amdhsa_kernel""")
open(OUT,'w').write("\n".join(o)+"\n")
```
